```python
import torch

def _softmax(x, axis=-1):
    return torch.softmax(x, dim=axis)
def _gelu(x):
    return torch.nn.functional.gelu(x, approximate="tanh")
def _silu(x):
    return torch.nn.functional.silu(x)
def _sigmoid(x):
    return torch.sigmoid(x)
def _layernorm(x, axis=-1, eps=1e-5):
    m = x.mean(dim=axis, keepdim=True)
    v = x.var(dim=axis, keepdim=True, unbiased=False)
    return (x - m) / torch.sqrt(v + eps)
def _scatter_add(tgt, idx, src, axis=0):
    return tgt.clone().index_add_(axis, idx, src)
def _segment_sum(src, seg, n):
    out = torch.zeros((n,) + src.shape[1:], dtype=src.dtype)
    return out.index_add_(0, seg, src)
def _pad(x, pw):
    flat = tuple(v for pair in reversed(pw) for v in pair)
    return torch.nn.functional.pad(x, flat)

kernel_name = 'concat_heads__ssm_conv_s4__spectral_gfnet__prompt'

def setup_inputs():

    _w = (lambda a: (lambda t: t.to(torch.bfloat16) if t.is_floating_point() else t)(torch.as_tensor(a)))
    def _A_setup():
        B, L, D, N = 1, 2048, 576, 128
        A_re = -(lambda _x: torch.exp(torch.as_tensor(_x)))((lambda *s: torch.randn(*s, dtype=torch.bfloat16) * 3.2)(D, N))
        A_im = torch.pi * (lambda *s: torch.randn(*s, dtype=torch.bfloat16) * 0.05)(D, N)
        B_re = (lambda *s: torch.randn(*s, dtype=torch.bfloat16) * 0.1)(D, N)
        B_im = (lambda *s: torch.randn(*s, dtype=torch.bfloat16) * 0.1)(D, N)
        C_re = (lambda *s: torch.randn(*s, dtype=torch.bfloat16) * 0.1)(D, N)
        C_im = (lambda *s: torch.randn(*s, dtype=torch.bfloat16) * 0.1)(D, N)
        log_dt = (lambda *s: torch.randn(*s, dtype=torch.bfloat16) * 0.05)(D) * 0.5 - 4.0
        Dskip = (lambda *s: torch.randn(*s, dtype=torch.bfloat16) * 0.05)(D)
        return {
            "u": _w((lambda *s: torch.randn(*s, dtype=torch.bfloat16) * 0.05)(B, L, D)),
            "A_re": _w(A_re),
            "A_im": _w(A_im),
            "B_re": _w(B_re),
            "B_im": _w(B_im),
            "C_re": _w(C_re),
            "C_im": _w(C_im),
            "log_dt": _w(log_dt),
            "Dskip": _w(Dskip),
        }
    _A_in = _A_setup()

    def _B_setup():
        B, S, D = 1, 2048, 576
        Df = D // 2 + 1
        return {
            "x": _w((lambda *s: torch.randn(*s, dtype=torch.bfloat16) * 0.05)(B, S, D)),
            "w_r": _w((lambda *s: torch.randn(*s, dtype=torch.bfloat16) * 1.6)(S, Df) * 0.02),
            "w_i": _w((lambda *s: torch.randn(*s, dtype=torch.bfloat16) * 1.6)(S, Df) * 0.02),
        }
    _B_in = _B_setup()

    return {
        "A_u": _A_in["u"],
        "A_A_re": _A_in["A_re"],
        "A_A_im": _A_in["A_im"],
        "A_B_re": _A_in["B_re"],
        "A_B_im": _A_in["B_im"],
        "A_C_re": _A_in["C_re"],
        "A_C_im": _A_in["C_im"],
        "A_log_dt": _A_in["log_dt"],
        "A_Dskip": _A_in["Dskip"],
        "B_x": _B_in["x"],
        "B_w_r": _B_in["w_r"],
        "B_w_i": _B_in["w_i"],
    }

def reference(A_u, A_A_re, A_A_im, A_B_re, A_B_im, A_C_re, A_C_im, A_log_dt, A_Dskip, B_x, B_w_r, B_w_i):
    def _A_ref(u, A_re, A_im, B_re, B_im, C_re, C_im, log_dt, Dskip):
        Bsz, L, D = u.shape
        dt = torch.exp(log_dt)[:, None]
        A = A_re + 1j * A_im
        Bc = B_re + 1j * B_im
        Cc = C_re + 1j * C_im
        logdA = dt * A
        dB = dt * Bc
        l = (lambda x, dt: x.to(dt))(torch.arange(L), A_re.dtype)
        P = torch.exp(logdA[:, :, None] * l[None, None, :])
        K = torch.einsum("dn,dnl,dn->dl", Cc, P, dB).real
        L2 = 2 * L
        Kp = _pad(K, ((0, 0), (0, L)))
        up = (lambda x, *d: x.permute(*d))(u, 0, 2, 1)
        up = _pad(up, ((0, 0), (0, 0), (0, L)))
        Kf = (lambda x, axes=(-2,-1): torch.fft.rfft2(x.float(), dim=axes))(Kp[:, None, :], axes=(-2, -1))
        Uf = (lambda x, axes=(-2,-1): torch.fft.rfft2(x.float(), dim=axes))(up[:, :, None, :], axes=(-2, -1))
        Yf = Uf * Kf[None, :, :, :]
        y = (lambda x, s, axes=(-2,-1): torch.fft.irfft2(x, s=s, dim=axes).to(torch.bfloat16))(Yf, (1, L2), axes=(-2, -1))[:, :, 0, :L]
        y = (lambda x, *d: x.permute(*d))(y, 0, 2, 1) + u * Dskip[None, None, :]
        return y

    def _B_ref(x, w_r, w_i):
        B, S, D = x.shape
        X = (lambda x, axes=(-2,-1): torch.fft.rfft2(x.float(), dim=axes))(x, axes=(-2, -1))
        W = w_r + 1j * w_i
        X = X * W
        y = (lambda x, s, axes=(-2,-1): torch.fft.irfft2(x, s=s, dim=axes).to(torch.bfloat16))(X, (S, D), axes=(-2, -1))
        return y

    a = _A_ref(A_u, A_A_re, A_A_im, A_B_re, A_B_im, A_C_re, A_C_im, A_log_dt, A_Dskip)
    b = _B_ref(B_x, B_w_r, B_w_i)
    return torch.concatenate([a, b], axis=-1)
```

```python
import re
TRANS = ("v_exp_f32","v_log_f32","v_rcp_f32","v_rsq_f32","v_sqrt_f32","v_sin_f32","v_cos_f32")
def regs(tok):
    tok = tok.strip()
    tok = tok.lstrip("-")
    m = re.fullmatch(r"abs\((.*)\)", tok)
    if m: tok = m.group(1)
    m = re.fullmatch(r"\|(.*)\|", tok)
    if m: tok = m.group(1)
    m = re.fullmatch(r"([vsa])(\d+)", tok)
    if m: return {(m.group(1), int(m.group(2)))}
    m = re.fullmatch(r"([vsa])\[(\d+):(\d+)\]", tok)
    if m: return {(m.group(1), i) for i in range(int(m.group(2)), int(m.group(3))+1)}
    if tok in ("vcc", "vcc_lo", "vcc_hi"): return {("s", "vcc")}
    if tok in ("exec", "exec_lo", "exec_hi"): return {("s", "exec")}
    if tok == "m0": return {("s", "m0")}
    return set()
class Ins:
    def __init__(self, text):
        self.text = text
        t = text.split(";")[0].strip()
        self.label = t.endswith(":")
        self.dir = t.startswith(".")
        self.empty = (t == "")
        self.op = ""; self.w = set(); self.r = set(); self.kind = "other"
        if self.label or self.dir or self.empty: return
        parts = t.split(None, 1)
        op = parts[0]; self.op = op
        rest = parts[1] if len(parts) > 1 else ""
        ops = []; depth = 0; cur = ""
        for ch in rest:
            if ch == "[": depth += 1
            if ch == "]": depth -= 1
            if ch == "," and depth == 0: ops.append(cur); cur = ""
            else: cur += ch
        ops.append(cur)
        last = ops[-1].strip().split()
        mods = " ".join(last[1:]) if last else ""
        if last: ops[-1] = last[0]
        ops = [o.strip() for o in ops if o.strip()]
        self.ops = ops; self.mods = mods
        R = [regs(o) for o in ops]
        base = re.sub(r"_(e32|e64|dpp|sdwa)$", "", op)
        self.base = base
        U = lambda l: set().union(*l) if l else set()
        if op.startswith("v_mfma"):
            self.kind = "mfma"; self.w = R[0]; self.a = R[1]; self.b = R[2]; self.c = R[3]; self.r = U(R[1:])
            self.passes = 8 if "32x32" in op else 4
            self.shape = op
        elif op.startswith("v_"):
            self.kind = "valu"
            self.trans = base in TRANS
            self.dpp = ("quad_perm" in mods or "row_" in mods or "wave_" in mods or op.endswith("_dpp"))
            if base.startswith("v_cmp"):
                self.w = R[0]; self.r = U(R[1:])
            elif base in ("v_readfirstlane_b32", "v_readlane_b32"):
                self.w = R[0]; self.r = U(R[1:]); self.kind = "valu"; self.rl = True
            elif base.startswith("v_permlane"):
                self.w = U(R[:2]); self.r = U(R[:2]); self.perml = True
            elif base in ("v_add_co_u32","v_sub_co_u32","v_addc_co_u32","v_subb_co_u32"):
                self.w = U(R[:2]); self.r = U(R[2:])
            else:
                self.w = R[0]; self.r = U(R[1:])
                if base in ("v_fmac_f32","v_fmaak_f32","v_pk_fmac_f16","v_writelane_b32") or self.dpp: self.r |= R[0]
                if base == "v_cndmask_b32" and len(ops) == 3: self.r |= {("s","vcc")}
        elif op.startswith("ds_"):
            self.kind = "ds"
            if "read" in op or "bpermute" in op or "permute" in op or "swizzle" in op:
                self.w = R[0]; self.r = U(R[1:])
            else: self.r = U(R)
        elif op.startswith("buffer_") or op.startswith("global_"):
            self.kind = "vmem"
            islds = (" lds" in (" " + mods)) or "load_lds" in op
            self.lds = islds
            if "store" in op:
                self.r = U(R)
                self.wide = op.endswith("x4") or op.endswith("x3")
                self.data = R[0] if op.startswith("buffer_") else R[1]
            elif islds:
                self.r = U(R) | {("s","m0")}
            elif "atomic" in op:
                self.r = U(R)
            elif op in ("buffer_wbl2", "buffer_inv"):
                pass
            else:
                self.w = R[0]; self.r = U(R[1:])
                if "d16" in op: self.r |= R[0]
        elif op.startswith("s_"):
            self.kind = "salu"
            if op.startswith(("s_cmp","s_cbranch","s_branch","s_waitcnt","s_nop","s_barrier","s_endpgm","s_setprio","s_sleep","s_bitcmp")):
                self.r = U(R)
            else:
                self.w = R[0]; self.r = U(R[1:])
                if "saveexec" in op: self.w |= {("s","exec")}
    def states(self):
        if self.label or self.dir or self.empty: return 0
        if self.op == "s_nop": return int(self.ops[0], 0) + 1
        return 1
def isv(s): return {x for x in s if x[0] in ("v", "a")}
def iss(s): return {x for x in s if x[0] == "s"}
def need(p, c):
    n = 0
    if p.kind == "valu":
        pw = isv(p.w); ps = iss(p.w)
        if c.kind == "mfma" and pw & c.r: n = max(n, 2)
        if c.kind == "valu":
            if getattr(p, "trans", False) and not getattr(c, "trans", False) and pw & c.r: n = max(n, 1)
            if ps & c.r: n = max(n, 4 if getattr(c, "rl", False) or c.base == "v_writelane_b32" else 2)
            if getattr(c, "rl", False) and pw & c.r: n = max(n, 1)
            if (getattr(c, "dpp", False) or getattr(c, "perml", False)) and pw & c.r: n = max(n, 2)
            if ("s","exec") in ps: n = max(n, 5)
        if c.kind == "mfma" and ("s","exec") in ps: n = max(n, 4)
        if c.kind == "vmem" and ps & c.r: n = max(n, 5)
        if c.kind == "salu" and ps & c.r: n = max(n, 1)
    if p.kind == "mfma":
        big = {4: 8, 8: 12}[p.passes]
        if c.kind == "mfma":
            if p.w & (c.a | c.b): n = max(n, big)
            if p.w & c.c:
                if not (c.c == p.w and c.shape == p.shape): n = max(n, {4: 6, 8: 10}[p.passes])
            elif p.w & c.w: n = max(n, big)
        elif c.kind == "valu":
            if p.w & (c.r | c.w): n = max(n, big)
            if p.c & c.w: n = max(n, {4: 3, 8: 7}[p.passes])
        elif c.kind in ("ds", "vmem"):
            if p.w & (c.r | c.w): n = max(n, big)
    if p.kind == "salu" and ("s","m0") in p.w and c.kind == "vmem" and getattr(c, "lds", False): n = max(n, 1)
    if p.kind == "vmem" and getattr(p, "wide", False):
        if c.kind == "valu" and p.data & c.w: n = max(n, 2)
        elif p.data & c.w: n = max(n, 1)
    return n
def pad(lines, verbose=False):
    out = []; hist = []
    tot = 0
    for l in lines:
        c = Ins(l)
        if c.op:
            d = 0; req = 0
            for p in reversed(hist):
                k = need(p, c) - d
                if k > req: req = k
                d += p.states()
                if d >= 20: break
            while req > 0:
                k = min(req, 16)
                nop = Ins(f"    s_nop {k-1}")
                out.append(nop.text + "  ; hz"); hist.append(nop); req -= k; tot += k
            if c.op in ("s_endpgm", "s_branch"): hist = []
            else: hist.append(c)
        out.append(l)
    return out, tot
class A:
    def __init__(self): self.l = []
    def __call__(self, s):
        for x in s.split("\n"):
            x = x.strip()
            if not x: continue
            self.l.append(x if x.endswith(":") or x.startswith(".") else "    " + x)
    def label(self, n): self.l.append(n + ":")
def vr(b, n=1): return f"v{b}" if n == 1 else f"v[{b}:{b+n-1}]"
def sr(b, n=1): return f"s{b}" if n == 1 else f"s[{b}:{b+n-1}]"
def f32hex(x):
    import struct
    return "0x%08x" % struct.unpack("<I", struct.pack("<f", x))[0]
```

```python
import sys, math
from asmlib import *
OPT = dict(a.split("=") if "=" in a else (a, "1") for a in sys.argv[2:])
STAMP = int(OPT.get("stamp", 0))
PF = int(OPT.get("pf", 1))
WS_X1 = 0x000000; WS_WT = 0x250000; WS_Y1 = 0x4A0000; WS_G = 0x6F0000; WS_UT = 0x950000; WS_YT = 0xBB0000
WS_STAMP = 0x1000000
COLB = 289*8192
GP = 4224
LOG2E = 1.4426950408889634
MF16 = "v_mfma_f32_16x16x32_bf16"; MF32 = "v_mfma_f32_32x32x16_bf16"

def cmul(a, o, x, y, conj=False):
    a(f"v_pk_mul_f32 {vr(o,2)}, {vr(x,2)}, {vr(y,2)} op_sel:[0,0] op_sel_hi:[1,0]")
    a(f"v_pk_fma_f32 {vr(o,2)}, {vr(x,2)}, {vr(y,2)}, {vr(o,2)} op_sel:[1,1,0] op_sel_hi:[0,1,1] {'neg_hi' if conj else 'neg_lo'}:[1,0,0]")
def cvt(a, d, lo, hi): a(f"v_cvt_pk_bf16_f32 v{d}, {lo}, {hi}")
def srd(a, s, base, off, nrec):
    if off == 0:
        a(f"s_mov_b32 s{s}, s{base}\ns_mov_b32 s{s+1}, s{base+1}")
    else:
        a(f"s_add_u32 s{s}, s{base}, {off}\ns_addc_u32 s{s+1}, s{base+1}, 0")
    a(f"s_mov_b32 s{s+2}, {nrec}\ns_mov_b32 s{s+3}, 0x20000")
def prefetch(a, name, vtmp, vdst):
    if not PF: return
    a(f"s_getpc_b64 s[36:37]\n{name}_pf:")
    a(f"v_lshlrev_b32 v{vtmp}, 6, v0\nv_min_u32 v{vtmp}, {name}_end-{name}_pf-4, v{vtmp}\nglobal_load_dword v{vdst}, v{vtmp}, s[36:37]")
def stamp_start(a):
    if STAMP: a("s_memrealtime s[90:91]")
def stamp_end(a, kidx, wsreg):
    if not STAMP: return
    a(f"""s_waitcnt vmcnt(0) lgkmcnt(0)
    s_memrealtime s[92:93]
    s_mov_b64 exec, -1
    v_lshrrev_b32 v1, 6, v0
    s_lshl_b32 s94, s2, 2
    v_add_u32 v1, s94, v1
    v_lshlrev_b32 v1, 4, v1
    v_add_u32 v1, {WS_STAMP + kidx*0x10000}, v1
    s_waitcnt lgkmcnt(0)
    v_mov_b32 v2, s90
    v_mov_b32 v3, s91
    v_mov_b32 v4, s92
    v_mov_b32 v5, s93
    s_mov_b64 exec, 1
    global_store_dwordx4 v1, v[2:5], s[{wsreg}:{wsreg+1}]""")
def twiddle(a, dr, di, tr, ti, t, P, swap=False, step=1):
    for h in (0, 2):
        a(f"v_pk_mul_f32 {vr(t+2*h,2)}, {vr(dr+h,2)}, {vr(tr+h,2)}")
        a(f"v_pk_mul_f32 {vr(t+2*h+2,2)}, {vr(dr+h,2)}, {vr(ti+h,2)}")
    for h in (0, 2):
        a(f"v_pk_fma_f32 {vr(t+2*h,2)}, {vr(di+h,2)}, {vr(ti+h,2)}, {vr(t+2*h,2)} neg_lo:[1,0,0] neg_hi:[1,0,0]")
        a(f"v_pk_fma_f32 {vr(t+2*h+2,2)}, {vr(di+h,2)}, {vr(tr+h,2)}, {vr(t+2*h+2,2)}")
    for i in range(4):
        re = t + 2*(i & 2) + (i & 1); im = re + 2
        cvt(a, P + i*step, f"v{im if swap else re}", f"v{re if swap else im}")

def role_kg(a):
    a("KG:")
    prefetch(a, "KG", 1, 127)
    a("""v_lshrrev_b32 v2, 6, v0
    v_and_b32 v1, 63, v0
    v_readfirstlane_b32 s40, v2
    v_mov_b32 v10, 0
    v_mov_b32 v11, 0
    v_mov_b32 v12, 0
    v_mov_b32 v13, 0
    v_mov_b32 v14, 0
    v_mov_b32 v15, 0
    s_lshr_b32 s46, s40, 1
    s_lshl_b32 s41, s2, 1
    s_add_u32 s41, s41, s46            ; d
    s_and_b32 s42, s40, 1              ; hf
    s_lshl_b32 s43, s2, 9
    s_lshl_b32 s44, s40, 7
    s_add_u32 s43, s43, s44            ; d*256 + hf*128
    v_lshl_add_u32 v3, v1, 1, s43
    s_lshl_b32 s45, s2, 2
    s_mul_i32 s47, s40, 8704           ; wave lds base
    v_lshl_add_u32 v4, v1, 2, s47      ; write addr
    v_and_b32 v5, 31, v1               ; r
    v_lshrrev_b32 v6, 5, v1            ; h
    v_mul_u32_u24 v7, 272, v5
    v_lshl_add_u32 v7, v6, 4, v7
    v_add_u32 v7, s47, v7              ; frag read addr
    s_waitcnt lgkmcnt(0)
    global_load_short_d16_hi v10, v3, s[10:11]
    global_load_short_d16_hi v11, v3, s[12:13]
    global_load_short_d16_hi v12, v3, s[14:15]
    global_load_short_d16_hi v13, v3, s[16:17]
    global_load_short_d16_hi v14, v3, s[18:19]
    global_load_short_d16_hi v15, v3, s[20:21]
    s_load_dword s48, s[22:23], s45
    s_load_dword s49, s[24:25], s45
    s_mul_i32 s50, s41, %d
    s_add_u32 s50, s50, %d
    s_add_u32 s50, s32, s50
    s_addc_u32 s51, s33, 0             ; G row base
    v_lshlrev_b32 v8, 4, v5
    v_lshlrev_b32 v9, 9, v6
    v_add_u32 v8, v8, v9               ; 16r + 512h
    v_add_u32 v9, v8, v9               ; 16r + 1024h
    v_sub_u32 v8, 3056, v8             ; slot1 offset (slot0 = +1024)
    v_sub_u32 v9, 2032, v9             ; slot2 offset (slot3 = -512)
    s_waitcnt lgkmcnt(0)
    s_lshl_b32 s52, s48, 16
    s_and_b32 s48, s48, 0xffff0000
    s_lshl_b32 s53, s49, 16
    s_and_b32 s49, s49, 0xffff0000
    s_cmp_eq_u32 s46, 0
    s_cselect_b32 s48, s52, s48        ; log_dt
    s_cselect_b32 s49, s53, s49        ; Dskip
    v_mov_b32 v16, %s
    v_mul_f32 v17, s48, v16
    v_exp_f32 v17, v17
    v_cmp_eq_u32 vcc, 0, v1
    v_mov_b32 v18, s49
    v_cvt_pk_bf16_f32 v17, v17, v17
    v_cndmask_b32 v18, 0, v18, vcc     ; dskip on lane 0
    v_and_b32 v17, 0xffff0000, v17     ; dt
    v_mul_f32 v16, v17, v16            ; dt*log2e  (rounded; fine)
    v_mul_f32 v19, 0.15915494, v17     ; dt/2pi
    s_waitcnt vmcnt(4)
    v_mul_f32 v20, v16, v10            ; lre2
    v_mul_f32 v21, v19, v11            ; lim (rev)
    """ % (GP, WS_G, f32hex(LOG2E)))
    Z1, Z8, Z256 = 22, 24, 26
    a(f"v_mul_f32 v28, 8.0, v20".replace("8.0", f32hex(8.0)))
    a(f"v_mul_f32 v29, {f32hex(8.0)}, v21\nv_mul_f32 v30, {f32hex(256.0)}, v20\nv_mul_f32 v31, {f32hex(256.0)}, v21")
    a("v_fract_f32 v29, v29\nv_fract_f32 v21, v21\nv_fract_f32 v31, v31")
    a("v_exp_f32 v28, v28\nv_cos_f32 v24, v29\nv_sin_f32 v25, v29")
    a("v_exp_f32 v20, v20\nv_cos_f32 v22, v21\nv_sin_f32 v23, v21")
    a("v_exp_f32 v30, v30\nv_cos_f32 v26, v31\nv_sin_f32 v27, v31")
    a("s_waitcnt vmcnt(0)")
    a("""v_mul_f32 v32, v14, v12
    v_mul_f32 v33, v14, v13
    v_fma_f32 v32, -v15, v13, v32
    v_fma_f32 v33, v15, v12, v33
    v_mul_f32 v24, v24, v28
    v_mul_f32 v25, v25, v28
    v_mul_f32 v32, v32, v17
    v_mul_f32 v33, -v33, v17
    v_mul_f32 v22, v22, v20
    v_mul_f32 v23, v23, v20
    v_mul_f32 v26, v26, v30
    v_mul_f32 v27, v27, v30""")
    Zr = {1: Z1, 8: Z8, 256: Z256}
    nxt = [36]
    def newz(e):
        Zr[e] = nxt[0]; nxt[0] += 2; return Zr[e]
    colops = []
    for e, x, y in [(2,1,1),(512,256,256),(3,2,1),(4,2,2),(768,512,256),(1024,512,512),(5,4,1),(6,4,2),(7,4,3),
                    (1280,1024,256),(1536,1024,512),(1792,1024,768)]:
        colops.append(("keep", e, x, y))
    for e, x, y in [(258,256,2),(260,256,4),(262,256,6),(264,256,8),(516,512,4),(520,512,8),(772,768,4),(776,768,8),
                    (1032,1024,8),(1288,1280,8),(1544,1536,8),(1800,1792,8)]:
        colops.append(("tmp", e, x, y))
    for k, e, x, y in colops:
        if k == "keep": newz(e)
    TMP = nxt[0]; nxt[0] += 4
    PK = {}
    exps = [0,1,2,3,4,5,6,7,512,516,520,1024,1032,1280,1288,256,258,260,262,264,768,772,776,1536,1544,1792,1800]
    for e in exps:
        PK[e] = nxt[0]; nxt[0] += 1
    CV = nxt[0]; nxt[0] += 2
    colq = []
    colq.append(lambda: a(f"v_mov_b32 v{PK[0]}, 0x3f80"))
    for e in (1, 256): colq.append(lambda e=e: cvt(a, PK[e], f"v{Zr[e]}", f"v{Zr[e]+1}"))
    ti = 0
    for k, e, x, y in colops:
        o = Zr[e] if k == "keep" else TMP + 2*(ti & 1)
        if k != "keep": ti += 1
        def f(o=o, x=x, y=y, e=e):
            cmul(a, o, Zr[x], Zr[y])
        colq.append(f)
        colq.append(lambda o=o, e=e: cvt(a, PK[e], f"v{o}", f"v{o+1}"))
    Q = [32, 34]
    for r in range(32):
        q = Q[r & 1]
        cvt(a, CV + (r & 1), f"v{q}", f"v{q+1}")
        if r < 31: cmul(a, Q[(r+1) & 1], q, Z8, conj=True)
        a(f"ds_write_b32 v4, v{CV + (r&1)} offset:{r*272}")
        for _ in range(2):
            if colq: colq.pop(0)()
    while colq: colq.pop(0)()
    FB = 20; ACC = 52; FA = (nxt[0] + 3) & ~3
    assert FA + 32 <= 128
    for ks in range(8): a(f"ds_read_b128 {vr(FB+4*ks,4)}, v7 offset:{32*ks}")
    slots = [[0,1,2,3,4,5,6,7,512,516,520,1024,1032,1280,1288],[256,256,258,260,260,260,262,264,768,772,776,1536,1544,1792,1800]]
    for h in range(2):
        for i, e in enumerate(slots[h]):
            rho = 8*(i >> 2) + 4*h + (i & 3)
            a(f"ds_write_b32 v4, v{PK[e]} offset:{rho*272}")
    for ks in range(8): a(f"ds_read_b128 {vr(FA+4*ks,4)}, v7 offset:{32*ks}")
    a("v_lshl_add_u32 v10, v1, 4, s47")
    a("s_xor_b32 s54, s40, 1\ns_mul_i32 s54, s54, 8704\nv_lshl_add_u32 v11, v1, 4, s54    ; partner")
    for ks in range(8):
        a(f"s_waitcnt lgkmcnt({7-ks})")
        a(f"{MF32} {vr(ACC,16)}, {vr(FA+4*ks,4)}, {vr(FB+4*ks,4)}, {'0' if ks == 0 else vr(ACC,16)}")
    a("s_cmp_eq_u32 s42, 0\ns_cbranch_scc0 KG_odd")
    a("s_nop 10")
    a(f"ds_write_b128 v10, {vr(ACC+8,4)}\nds_write_b128 v10, {vr(ACC+12,4)} offset:1024")
    a(f"v_add_f32 v{ACC}, v{ACC}, v18")
    a("s_waitcnt lgkmcnt(0)\ns_barrier")
    a(f"ds_read_b128 {vr(FB,4)}, v11\nds_read_b128 {vr(FB+4,4)}, v11 offset:1024")
    a(f"v_mov_b32 v{FA+4}, 0\nv_mov_b32 v{FA+5}, 0\nv_mov_b32 v{FA+6}, 0\nv_mov_b32 v{FA+7}, 0\nv_mov_b32 v12, 4096")
    a("s_waitcnt lgkmcnt(0)")
    for i in range(0, 8, 2): a(f"v_pk_add_f32 {vr(ACC+i,2)}, {vr(ACC+i,2)}, {vr(FB+i,2)}")
    for j in range(4): cvt(a, FA+j, f"v{ACC+7-2*j}", f"v{ACC+6-2*j}")
    a(f"global_store_dwordx4 v8, {vr(FA,4)}, s[50:51] offset:1024")
    a(f"s_mov_b64 exec, 1\nglobal_store_dwordx4 v12, {vr(FA+4,4)}, s[50:51]")
    stamp_end(a, 0, 32)
    a("s_endpgm")
    a("KG_odd:\ns_nop 10")
    a(f"ds_write_b128 v10, {vr(ACC,4)}\nds_write_b128 v10, {vr(ACC+4,4)} offset:1024")
    a("v_and_b32 v12, 1, v1\nv_cmp_eq_u32 vcc, 0, v12")
    a("s_waitcnt lgkmcnt(0)\ns_barrier")
    a(f"ds_read_b128 {vr(FB,4)}, v11\nds_read_b128 {vr(FB+4,4)}, v11 offset:1024")
    a("s_waitcnt lgkmcnt(0)")
    for i in range(0, 8, 2): a(f"v_pk_add_f32 {vr(ACC+8+i,2)}, {vr(ACC+8+i,2)}, {vr(FB+i,2)}")
    V = lambda i: f"v{ACC+i}"
    cvt(a, FA+0, V(10), V(10)); cvt(a, FA+1, V(9), V(9)); cvt(a, FA+2, V(9), V(8)); cvt(a, FA+3, V(8), V(8))
    a(f"global_store_dwordx4 v8, {vr(FA,4)}, s[50:51]")
    for q in range(2):
        v0_, v1_ = V(11+2*q), V(12+2*q); o = FA + 4 + 4*q
        a(f"v_cndmask_b32 v13, {v1_}, {v0_}, vcc")
        cvt(a, o, v1_, v1_); cvt(a, o+2, v0_, v0_); cvt(a, o+1, v1_, "v13"); cvt(a, o+3, v0_, v0_)
        a(f"global_store_dwordx4 v9, {vr(o,4)}, s[50:51] offset:{-512*q}")
    stamp_end(a, 0, 32)
    a("s_endpgm\nKG_end:")
    return FA + 32

def unit_decode(a, first):
    a(f"""v_lshrrev_b32 v2, 6, v0
    v_and_b32 v1, 63, v0
    v_readfirstlane_b32 s40, v2
    s_sub_u32 s43, s2, {first}
    s_and_b32 s44, s43, 7               ; x
    s_lshr_b32 s43, s43, 3              ; y
    s_and_b32 s45, s43, 1
    s_lshr_b32 s43, s43, 1
    s_lshl_b32 s43, s43, 3
    s_add_u32 s43, s43, s44
    s_lshl_b32 s43, s43, 1
    s_add_u32 s41, s43, s45             ; U = bp + 8*(g + 4w)
    s_and_b32 s43, s41, 7               ; bp
    s_lshl_b32 s43, s43, 4              ; 8*2*bp
    s_bfe_u32 s44, s41, 0x20003         ; g
    s_lshl_b32 s44, s44, 9
    s_add_u32 s43, s43, s44
    s_lshr_b32 s44, s41, 5              ; w
    s_lshl_b32 s44, s44, 1
    s_add_u32 s43, s43, s44
    s_lshr_b32 s44, s40, 1
    s_lshl_b32 s44, s44, 3
    s_add_u32 s43, s43, s44
    s_and_b32 s44, s40, 1
    s_add_u32 s42, s43, s44             ; s_0 = 512g + 8b + 2w + e
    s_lshl_b32 s45, s41, 6
    s_lshl_b32 s46, s40, 4
    s_add_u32 s45, s45, s46
    v_and_b32 v3, 15, v1                ; rho
    v_lshrrev_b32 v4, 4, v1             ; g""")

def role_b1(a, first):
    a("B1:")
    prefetch(a, "B1", 1, 127)
    unit_decode(a, first)
    a("s_mul_i32 s47, s42, 1152\ns_mul_i32 s48, s40, 5120\ns_mov_b32 s49, 146304\ns_mov_b32 s50, 911")
    for j in range(5):
        a(f"v_add_u32 v5, {64*j}, v1\nv_mul_u32_u24 v6, s50, v5\nv_lshrrev_b32 v6, 16, v6\nv_mul_lo_u32 v6, v6, s49\nv_lshl_add_u32 v5, v5, 4, s47\nv_add_u32 v{10+j}, v5, v6")
    a("s_waitcnt lgkmcnt(0)")
    srd(a, 52, 26, 0, 2048*1152)
    srd(a, 56, 32, WS_X1, COLB)
    for j in range(5):
        a(f"s_mov_b32 m0, s48" if j == 0 else f"s_add_u32 m0, m0, 1024")
        a(f"buffer_load_dwordx4 v{10+j}, s[52:55], 0 offen lds")
    C1R, C1I, TAR, TAI, TBR, TBI = 16, 20, 24, 28, 32, 36
    SA, SL, SH = 40, 52, 64
    AD = 76
    RA0, RA1, RB0, RB1 = 82, 83, 84, 85
    FR = 88
    D = 112
    T = 160
    a(f"""v_cvt_f32_u32 v5, v3                 ; k1
    v_lshlrev_b32 v6, 2, v4
    v_cvt_f32_u32 v7, v6                 ; 4g
    v_and_b32 v8, 4, v6
    v_add_u32 v8, 16, v8
    v_cvt_f32_u32 v9, v8                 ; 16+4(g&1)
    v_cmp_gt_u32 vcc, 2, v4
    v_mul_f32 v15, {f32hex(1/24)}, v5    ; st
    v_cndmask_b32 v10, 0, -1, vcc       ; maskG
    v_not_b32 v11, v10""")
    a(f"""v_lshrrev_b32 v{T}, 2, v3
    v_add_u32 v{T+1}, v6, v{T}
    v_add_u32 v{T+2}, v8, v{T}
    v_mul_u32_u24 v{T+1}, 48, v{T+1}
    v_mul_u32_u24 v{T+2}, 48, v{T+2}
    v_and_b32 v{T+3}, 3, v3
    v_lshl_add_u32 v{T+4}, v{T+3}, 3, s48
    v_add_u32 v{RA0}, v{T+1}, v{T+4}
    v_add_u32 v{RA1}, v{T+2}, v{T+4}
    v_and_b32 v{T+4}, 1, v3
    v_lshl_add_u32 v{T+4}, v{T+4}, 3, s48
    v_lshrrev_b32 v{T+3}, 1, v{T+3}
    v_mul_u32_u24 v{T+3}, 1152, v{T+3}
    v_add3_u32 v{T+4}, v{T+4}, v{T+3}, 32
    v_add_u32 v{RB0}, v{T+1}, v{T+4}
    v_add_u32 v{RB1}, v{T+2}, v{T+4}""")
    def angles(base_f, st, dst, ph=None):
        if ph is None: a(f"v_mul_f32 v{dst}, v{st}, v{base_f}")
        else: a(f"v_fma_f32 v{dst}, v{st}, v{base_f}, v{ph}")
        a(f"v_add_f32 v{dst+1}, v{dst}, v{st}\nv_fma_f32 v{dst+2}, 2.0, v{st}, v{dst}\nv_add_f32 v{dst+3}, v{dst+2}, v{st}")
    for h, bf in ((0, 7), (1, 9)):
        angles(bf, 15, D)
        for j in range(4): a(f"v_cos_f32 v{D+4+j}, v{D+j}\nv_sin_f32 v{D+8+j}, -v{D+j}")
        for j in (0, 2):
            cvt(a, C1R + 2*h + j//2, f"v{D+4+j}", f"v{D+5+j}"); cvt(a, C1I + 2*h + j//2, f"v{D+8+j}", f"v{D+9+j}")
    for r in (C1R+2, C1R+3, C1I+2, C1I+3): a(f"v_and_b32 v{r}, v10, v{r}")
    a(f"v_mul_f32 v15, {f32hex(1/576)}, v5")
    for bf, tr, ti in ((7, TAR, TAI), (9, TBR, TBI)):
        angles(bf, 15, D)
        for j in range(4): a(f"v_cos_f32 v{tr+j}, v{D+j}\nv_sin_f32 v{ti+j}, -v{D+j}")
    a(f"""v_lshrrev_b32 v{T}, 1, v3
    v_cvt_f32_u32 v{T+1}, v{T}            ; rho>>1
    v_and_b32 v{T+2}, 1, v3
    v_cvt_f32_u32 v{T+2}, v{T+2}
    v_mul_f32 v{T+2}, 0.25, v{T+2}""".replace("0.25", f32hex(0.25)))
    a(f"v_cmp_gt_u32 vcc, 8, v3\nv_mul_f32 v{T+1}, {f32hex(1/24)}, v{T+1}\nv_sub_f32 v{T+3}, 0, v{T+2}\nv_cndmask_b32 v{T+4}, v{T+3}, v{T+2}, vcc")
    for tau in range(3):
        ph = [T+2, T+4, T+3][tau]
        if tau: a(f"v_add_f32 v{T+1}, {f32hex(8/24)}, v{T+1}")
        for bf, dst in ((7, SA), (9, SL)):
            angles(bf, T+1, D, ph)
            for j in range(4): a(f"v_cos_f32 v{D+4+j}, v{D+j}\nv_sin_f32 v{D+8+j}, v{D+j}")
            for j in range(4): cvt(a, dst + 4*tau + j, f"v{D+4+j}", f"v{D+8+j}")
        for j in range(4):
            a(f"v_and_b32 v{SH+4*tau+j}, v11, v{SL+4*tau+j}\nv_and_b32 v{SL+4*tau+j}, v10, v{SL+4*tau+j}")
    a(f"v_mul_u32_u24 v{T}, 48, v4\nv_add_u32 v{T}, v{T}, v3         ; k1+48g")
    a(f"v_cmp_lt_u32 vcc, 12, v3\nv_mov_b32 v{T+1}, s45\nv_mov_b32 v{T+2}, 0x40000000\nv_cndmask_b32 v{T+1}, v{T+1}, v{T+2}, vcc")
    a(f"v_cmp_gt_u32 vcc, 2, v4")
    for tau in range(3):
        for o in range(2):
            kc = 24*(8*tau + o); ad = AD + 2*tau + o
            if tau == 0: a(f"v_add_u32 v{ad}, {kc}, v{T}")
            elif tau == 2: a(f"v_sub_u32 v{ad}, {576-kc}, v{T}")
            else: a(f"v_add_u32 v{ad}, {kc}, v{T}\nv_sub_u32 v{T+3}, {576-kc}, v{T}\nv_cndmask_b32 v{ad}, v{T+3}, v{ad}, vcc")
            a(f"v_lshl_add_u32 v{ad}, v{ad}, 13, v{T+1}")
    a("s_waitcnt vmcnt(0)")
    tiles = [(RA0, RA1, 0), (RA0, RA1, 1152), (RB0, RB1, 0), (RA0, RA1, 2304), (RA0, RA1, 3456), (RB0, RB1, 2304)]
    for t, (r0, r1, off) in enumerate(tiles):
        a(f"ds_read_b64_tr_b16 {vr(FR+4*t,2)}, v{r0} offset:{off}\nds_read_b64_tr_b16 {vr(FR+4*t+2,2)}, v{r1} offset:{off}")
    for t in range(6):
        a(f"s_waitcnt lgkmcnt({10-2*t})")
        a(f"{MF16} {vr(D+8*t,4)}, {vr(FR+4*t,4)}, {vr(C1R,4)}, 0\n{MF16} {vr(D+8*t+4,4)}, {vr(FR+4*t,4)}, {vr(C1I,4)}, 0")
    O = 16
    def tw(t):
        isB = t in (2, 5)
        twiddle(a, D+8*t, D+8*t+4, TBR if isB else TAR, TBI if isB else TAI, T, FR+4*t)
    def st2(i):
        p = i >> 1; tA = 3*p + (i & 1); tB = 3*p + 2; d2 = D + 12*i
        for tau in range(3): a(f"{MF16} {vr(d2+4*tau,4)}, {vr(SA+4*tau,4)}, {vr(FR+4*tA,4)}, 0")
        for tau in range(3): a(f"{MF16} {vr(d2+4*tau,4)}, {vr((SH if i & 1 else SL)+4*tau,4)}, {vr(FR+4*tB,4)}, {vr(d2+4*tau,4)}")
    def oc(i):
        d2 = D + 12*i
        for tau in range(3):
            for o in range(2): cvt(a, O + 8*tau + 4*o + i, f"v{d2+4*tau+2*o}", f"v{d2+4*tau+2*o+1}")
    tw(0); tw(1); tw(2); st2(0); tw(3); st2(1); tw(4); tw(5); st2(2); oc(0); st2(3); oc(1); oc(2); oc(3)
    for x in range(6): a(f"buffer_store_dwordx4 {vr(O+4*x,4)}, v{AD+x}, s[56:59], 0 offen")
    stamp_end(a, 0, 32)
    a("s_endpgm\nB1_end:")
    return T + 8

def role_wt(a, first):
    a("WT:")
    prefetch(a, "WT", 1, 127)
    M = 57853; S = 25
    assert all((t*M) >> S == t//580 for t in range(37120)) and 37120*M < 2**32
    a(f"""s_sub_u32 s40, s2, {first}
    s_lshl_b32 s40, s40, 8
    v_add_u32 v1, s40, v0               ; t
    s_mov_b32 s41, {M}
    v_mul_u32_u24 v2, s41, v1
    v_lshrrev_b32 v2, {S}, v2           ; pq
    v_mul_u32_u24 v3, 580, v2
    v_sub_u32 v3, v1, v3                ; r
    v_and_b32 v4, 3, v3
    v_lshl_add_u32 v4, v2, 2, v4        ; p
    v_lshrrev_b32 v3, 2, v3             ; kp
    v_and_b32 v5, 15, v4                ; a'
    v_lshrrev_b32 v6, 6, v4             ; w
    v_lshl_add_u32 v5, v6, 5, v5        ; + 32w
    v_bfe_u32 v6, v4, 5, 1              ; g>>1
    v_lshl_add_u32 v5, v6, 7, v5
    v_bfe_u32 v6, v4, 4, 1              ; g&1
    v_lshl_add_u32 v5, v6, 10, v5       ; m0
    v_mul_u32_u24 v5, 578, v5
    v_lshl_add_u32 v5, v3, 2, v5
    v_lshlrev_b32 v6, 14, v3
    v_lshl_add_u32 v6, v4, 5, v6
    v_add_u32 v7, 8192, v6""")
    for x in range(1, 8): a(f"s_mov_b32 s{60+x}, {(16*(x>>2) + 256*(x&3))*578}")
    a("s_mov_b32 s42, 0x05040100\ns_mov_b32 s43, 0x07060302")
    a("s_waitcnt lgkmcnt(0)")
    srd(a, 44, 28, 0, 2048*578 + 4); srd(a, 48, 30, 0, 2048*578 + 4); srd(a, 52, 32, WS_WT, COLB)
    for x in range(8):
        so = "0" if x == 0 else f"s{60+x}"
        a(f"buffer_load_dword v{8+x}, v5, s[44:47], {so} offen\nbuffer_load_dword v{16+x}, v5, s[48:51], {so} offen")
    for x in range(8):
        a(f"s_waitcnt vmcnt({14-2*x + (2 if x > 3 else 0)})\nv_perm_b32 v{24+x}, v{16+x}, v{8+x}, s42\nv_perm_b32 v{32+x}, v{16+x}, v{8+x}, s43")
        if x in (3, 7):
            o = 4*(x >> 2)
            a(f"buffer_store_dwordx4 {vr(24+o,4)}, v6, s[52:55], 0 offen offset:{4*o}\nbuffer_store_dwordx4 {vr(32+o,4)}, v7, s[52:55], 0 offen offset:{4*o}")
    stamp_end(a, 0, 32)
    a("s_endpgm\nWT_end:")
    return 40

def role_ut(a, first):
    a("UT:")
    prefetch(a, "UT", 1, 127)
    a(f"""v_lshrrev_b32 v2, 6, v0
    v_and_b32 v1, 63, v0
    v_readfirstlane_b32 s40, v2
    s_sub_u32 s41, s2, {first}
    s_lshr_b32 s42, s41, 4              ; cb
    s_and_b32 s41, s41, 15
    s_lshl_b32 s41, s41, 2
    s_add_u32 s41, s41, s40             ; lb
    s_mul_i32 s43, s41, {32*1152}
    s_lshl_b32 s44, s42, 7
    s_add_u32 s43, s43, s44
    v_lshrrev_b32 v3, 3, v1
    v_mul_u32_u24 v3, 1152, v3
    v_and_b32 v4, 7, v1
    v_lshl_add_u32 v3, v4, 4, v3
    v_add_u32 v3, s43, v3               ; src
    s_lshl_b32 s45, s40, 12
    v_and_b32 v5, 15, v1                ; rho
    v_lshrrev_b32 v6, 4, v1             ; g
    v_lshrrev_b32 v7, 2, v5
    v_lshl_add_u32 v7, v6, 3, v7
    v_lshlrev_b32 v7, 7, v7
    v_and_b32 v8, 3, v5
    v_lshl_add_u32 v7, v8, 3, v7
    v_add_u32 v7, s45, v7
    s_mul_i32 s46, s42, {64*GP}
    s_lshl_b32 s47, s41, 6
    s_add_u32 s47, s47, s46
    s_add_u32 s47, s47, 128
    v_mul_u32_u24 v8, {GP}, v5
    v_lshl_add_u32 v8, v6, 4, v8
    v_add_u32 v8, s47, v8               ; dst
    s_mov_b32 s61, 9216
    s_mov_b32 s62, 18432
    s_mov_b32 s63, 27648
    s_mov_b32 s65, {16*GP}
    s_mov_b32 s66, {32*GP}
    s_mov_b32 s67, {48*GP}
    s_waitcnt lgkmcnt(0)""")
    srd(a, 48, 8, 0, 2048*1152); srd(a, 52, 32, WS_UT, 576*GP)
    for j in range(4):
        a("s_mov_b32 m0, s45" if j == 0 else "s_add_u32 m0, m0, 1024")
        a(f"buffer_load_dwordx4 v3, s[48:51], {'0' if j == 0 else 's%d' % (60+j)} offen lds")
    a(f"""s_cmp_eq_u32 s41, 0
    s_cbranch_scc0 UT_nopad
    v_mul_u32_u24 v9, {GP}, v1
    s_add_u32 s46, s46, 112
    v_add_u32 v9, s46, v9
    v_mov_b32 v12, 0
    v_mov_b32 v13, 0
    v_mov_b32 v14, 0
    v_mov_b32 v15, 0
    buffer_store_dwordx4 v[12:15], v9, s[52:55], 0 offen
    UT_nopad:
    s_waitcnt vmcnt(0)""")
    for cg in range(4):
        a(f"ds_read_b64_tr_b16 {vr(16+4*cg,2)}, v7 offset:{32*cg}\nds_read_b64_tr_b16 {vr(18+4*cg,2)}, v7 offset:{512+32*cg}")
    for cg in range(4):
        a(f"s_waitcnt lgkmcnt({6-2*cg})\nbuffer_store_dwordx4 {vr(16+4*cg,4)}, v8, s[52:55], {'0' if cg == 0 else 's%d' % (64+cg)} offen")
    stamp_end(a, 0, 32)
    a("s_endpgm\nUT_end:")
    return 32

C0, C1_, U0, U2 = 0, 5216, 10432, 15648
def role_conv(a):
    a("CV:")
    prefetch(a, "CV", 1, 127)
    a(f"""v_lshrrev_b32 v2, 6, v0
    v_and_b32 v1, 63, v0
    v_readfirstlane_b32 s40, v2
    s_mul_i32 s42, s41, {GP}
    s_add_u32 s43, s42, {WS_G}
    s_add_u32 s42, s42, {WS_UT + 112}
    s_cmp_lt_u32 s40, 2
    s_cselect_b32 s42, s43, s42
    s_movk_i32 s46, 4112
    s_cselect_b32 s43, 2, -432
    s_cselect_b32 s44, -2, -4
    s_and_b32 s50, s40, 1
    s_mul_i32 s44, s44, s50
    s_add_u32 s43, s43, s44             ; delta
    s_mul_i32 s48, s40, {C1_}
    v_lshl_add_u32 v3, v1, 4, s43
    v_add_u32 v4, 1024, v3
    s_mov_b32 s47, 0x20000
    s_mov_b32 m0, s48
    s_waitcnt lgkmcnt(0)
    s_add_u32 s44, s8, s42
    s_addc_u32 s45, s9, 0
    buffer_load_dwordx4 v3, s[44:47], 0 offen lds
    s_add_u32 m0, m0, 1024""")
    for j in range(4): a(f"buffer_load_dwordx4 v4, s[44:47], 0 offen offset:{1024*j} lds")
    a(f"""v_and_b32 v5, 15, v1               ; r / i
    v_lshrrev_b32 v6, 4, v1             ; g
    v_and_b32 v7, 1, v1
    v_lshrrev_b32 v8, 1, v5
    s_lshl_b32 s50, s40, 7              ; 64*n0
    s_sub_u32 s51, {C0 + 4088 - 3584}, s50
    v_mul_u32_u24 v9, {C1_-C0}, v7
    v_lshl_add_u32 v9, v6, 4, v9
    v_lshlrev_b32 v10, 3, v8
    v_sub_u32 v9, v9, v10
    v_add_u32 v9, s51, v9               ; A addr (n0)
    s_sub_u32 s51, {U2 + 448}, s50
    v_mul_u32_u24 v10, {U2-U0}, v7
    v_sub_u32 v10, s51, v10
    v_lshl_add_u32 v10, v8, 6, v10
    v_lshl_add_u32 v10, v6, 4, v10      ; B addr (n0)
    v_subrev_u32 v11, 64, v9
    v_subrev_u32 v12, 64, v10
    s_mul_i32 s51, s40, 9216
    v_mul_u32_u24 v13, 144, v8
    v_lshl_add_u32 v13, v6, 5, v13
    v_lshl_add_u32 v13, v7, 3, v13
    v_add_u32 v13, s51, v13
    s_mul_i32 s51, s40, 2304
    v_lshrrev_b32 v14, 3, v1
    v_mul_u32_u24 v14, 144, v14
    v_and_b32 v15, 7, v1
    v_lshl_add_u32 v14, v15, 4, v14
    v_add_u32 v14, s51, v14
    s_lshl_b32 s51, s41, 12
    s_lshl_b32 s52, s40, 10
    s_add_u32 s51, s51, s52
    s_add_u32 s51, s51, {WS_YT}
    v_lshl_add_u32 v15, v1, 3, s51
    s_waitcnt vmcnt(0)
    s_barrier""")
    ACC, FA, FB = 16, 48, 80
    for st in range(2):
        va, vb = (9, 10) if st == 0 else (11, 12)
        for k in range(8):
            a(f"ds_read_b64 {vr(FA+4*k,2)}, v{va} offset:{512*(7-k)}\nds_read_b64 {vr(FA+4*k+2,2)}, v{va} offset:{512*(7-k)+8}")
            a(f"ds_read_b128 {vr(FB+4*k,4)}, v{vb} offset:{512*k}")
            if k >= 4:
                kk = k - 4
                a(f"s_waitcnt lgkmcnt(12)")
                emit_pairs(a, kk, st, ACC, FA, FB)
        for kk in range(4, 8):
            a(f"s_waitcnt lgkmcnt({3*(7-kk)})")
            emit_pairs(a, kk, st, ACC, FA, FB)
    a("s_barrier")
    for t in range(8):
        a(f"ds_write_b64 v13, {vr(ACC+4*t,2)} offset:{1152*t}\nds_write_b64 v13, {vr(ACC+4*t+2,2)} offset:{1152*t+16}")
    a("s_waitcnt lgkmcnt(0)\ns_barrier")
    for e in range(2):
        for w in range(4): a(f"ds_read_b128 {vr(FA+16*e+4*w,4)}, v14 offset:{9216*w+1152*e}")
    for e in range(2):
        b = FA + 16*e
        a(f"s_waitcnt lgkmcnt({4-4*e})")
        for h in (0, 2):
            a(f"v_pk_add_f32 {vr(b+h,2)}, {vr(b+h,2)}, {vr(b+4+h,2)}\nv_pk_add_f32 {vr(b+8+h,2)}, {vr(b+8+h,2)}, {vr(b+12+h,2)}")
        for h in (0, 2): a(f"v_pk_add_f32 {vr(b+h,2)}, {vr(b+h,2)}, {vr(b+8+h,2)}")
        cvt(a, b+4, f"v{b}", f"v{b+1}"); cvt(a, b+5, f"v{b+2}", f"v{b+3}")
        a(f"global_store_dwordx2 v15, {vr(b+4,2)}, s[8:9] offset:{512*e}")
    stamp_end(a, 1, 8)
    a("s_endpgm\nCV_end:")
    return 112
def emit_pairs(a, k, st, ACC, FA, FB):
    ps = [(k, b) for b in range(k)] + [(x, k) for x in range(k)] + [(k, k)]
    for x, b in ps:
        t = x + b
        if t > 7: continue
        first = (st == 0) and FIRST.get(t) is None
        if first: FIRST[t] = 1
        a(f"{MF16} {vr(ACC+4*t,4)}, {vr(FA+4*x,4)}, {vr(FB+4*b,4)}, {'0' if first else vr(ACC+4*t,4)}")
FIRST = {}

def role_fft(a):
    a("FT:")
    prefetch(a, "FT", 1, 127)
    X, W, D, T = 8, 16, 24, 40
    F16C, F16S, F8C, F8S = 48, 52, 56, 60
    G2C, G2S, H2C, H2S = 64, 72, 80, 88
    T1R, T1I, T2R, T2I = 96, 104, 112, 120-0
    a(f"""v_lshrrev_b32 v2, 6, v0
    v_and_b32 v1, 63, v0
    v_readfirstlane_b32 s40, v2
    s_lshl_b32 s42, s41, 13
    v_lshl_add_u32 v3, v0, 5, s42
    s_waitcnt lgkmcnt(0)
    s_add_u32 s44, s8, {WS_WT}
    s_addc_u32 s45, s9, 0
    global_load_dwordx4 {vr(X,4)}, v3, s[8:9]
    global_load_dwordx4 {vr(X+4,4)}, v3, s[8:9] offset:16
    global_load_dwordx4 {vr(W,4)}, v3, s[44:45]
    global_load_dwordx4 {vr(W+4,4)}, v3, s[44:45] offset:16
    s_add_u32 s46, s8, {WS_Y1}
    s_addc_u32 s47, s9, 0
    v_and_b32 v6, 15, v1                ; rho
    v_lshrrev_b32 v7, 4, v1             ; g
    v_and_b32 v4, 1, v7
    v_lshlrev_b32 v4, 12, v4
    v_lshrrev_b32 v5, 1, v7
    v_lshl_add_u32 v4, v5, 9, v4
    v_lshl_add_u32 v4, v6, 4, v4
    s_lshr_b32 s48, s40, 1
    s_lshl_b32 s48, s48, 8
    s_and_b32 s49, s40, 1
    s_lshl_b32 s49, s49, 3
    s_add_u32 s48, s48, s49
    v_add_u32 v4, s48, v4
    v_lshrrev_b32 v{T+4}, 3, v6
    v_cmp_eq_u32 vcc, v{T+4}, v5          ; beta==beta'
    s_lshl_b32 s48, s40, 11
    v_lshl_add_u32 v5, v1, 4, s48
    v_cndmask_b32 v{T+7}, 0, -1, vcc
    v_cvt_f32_u32 v{T}, v6                ; rho f
    v_lshlrev_b32 v{T+1}, 2, v7
    v_and_b32 v{T+2}, 4, v{T+1}
    v_cvt_f32_u32 v{T+1}, v{T+1}           ; 4g f
    v_cvt_f32_u32 v{T+2}, v{T+2}           ; 4(g&1) f
    v_and_b32 v{T+3}, 7, v6
    v_cvt_f32_u32 v{T+3}, v{T+3}           ; c' f
    s_lshl_b32 s48, s40, 1
    v_cvt_f32_u32 v{T+4}, s48             ; c0 f""")
    A_ = D; CO = D+4; SI = D+8
    def angles(base_f, st, ph=None):
        if ph is None: a(f"v_mul_f32 v{A_}, v{st}, v{base_f}")
        else: a(f"v_fma_f32 v{A_}, v{st}, v{base_f}, v{ph}")
        a(f"v_add_f32 v{A_+1}, v{A_}, v{st}\nv_fma_f32 v{A_+2}, 2.0, v{st}, v{A_}\nv_add_f32 v{A_+3}, v{A_+2}, v{st}")
    def consts(c, s, mask=None):
        for j in range(4): a(f"v_cos_f32 v{CO+j}, v{A_+j}\nv_sin_f32 v{SI+j}, v{A_+j}")
        for j in range(4):
            cvt(a, c+j, f"v{CO+j}", f"v{SI+j}"); cvt(a, s+j, f"-v{SI+j}", f"v{CO+j}")
        if mask is not None:
            for j in range(4): a(f"v_and_b32 v{c+j}, v{mask}, v{c+j}\nv_and_b32 v{s+j}, v{mask}, v{s+j}")
    ST, PH = D+12, D+13
    a(f"v_mul_f32 v{ST}, {f32hex(1/16)}, v{T}"); angles(T+1, ST); consts(F16C, F16S)
    for e in range(2):
        if e: a(f"v_add_f32 v{T+4}, 1.0, v{T+4}")
        a(f"v_mul_f32 v{PH}, v{T}, v{T+4}\nv_mul_f32 v{ST}, {f32hex(1/256)}, v{T}\nv_mul_f32 v{PH}, {f32hex(1/2048)}, v{PH}")
        angles(T+1, ST, PH)
        for j in range(4): a(f"v_cos_f32 v{T1R+4*e+j}, v{A_+j}\nv_sin_f32 v{T1I+4*e+j}, -v{A_+j}")
        for j in range(4): a(f"v_mul_f32 v{A_+j}, {f32hex(16.0)}, v{A_+j}")
        consts(G2C+4*e, G2S+4*e)
    a(f"v_mul_f32 v{ST}, {f32hex(1/8)}, v{T+3}"); angles(T+2, ST); consts(F8C, F8S, T+7)
    a(f"v_add_f32 v{T+4}, -1.0, v{T+4}")
    for e in range(2):
        if e: a(f"v_add_f32 v{T+4}, 1.0, v{T+4}")
        a(f"v_fma_f32 v{ST}, v{T}, {f32hex(8.0)}, v{T+4}".replace(f32hex(8.0), "s50"))
        if e == 0: a.l.insert(len(a.l)-1, f"    s_mov_b32 s50, {f32hex(8.0)}")
        a(f"v_mul_f32 v{ST}, {f32hex(1/2048)}, v{ST}")
        angles(T+1, ST)
        for j in range(4): a(f"v_cos_f32 v{T2R+4*e+j}, v{A_+j}\nv_sin_f32 v{T2I+4*e+j}, v{A_+j}".replace(f"v{T2I+4*e+j},", f"v{T2I+4*e+j if T2I+4*e+j < 127 else 2},"))
        for j in range(4): a(f"v_mul_f32 v{A_+j}, {f32hex(16.0)}, v{A_+j}")
        consts(H2C+4*e, H2S+4*e)
    DR = lambda e: D + 8*e
    DI = lambda e: D + 8*e + 4
    def stage(e, cc, cs, asA, inv):
        re, im = (DI(e), DR(e)) if inv else (DR(e), DI(e))
        for dst, k in ((re, cc), (im, cs)):
            if asA: a(f"{MF16} {vr(dst,4)}, {vr(X+4*e,4)}, {vr(k,4)}, 0")
            else: a(f"{MF16} {vr(dst,4)}, {vr(k,4)}, {vr(X+4*e,4)}, 0")
    def exch(buf, swap):
        for e in range(2):
            for i in range(4):
                lo, hi = f"v{DR(e)+i}", f"v{DI(e)+i}"
                if swap: lo, hi = hi, lo
                cvt(a, X + 2*i + e, lo, hi)
        for i in range(4): a(f"ds_write_b64 v4, {vr(X+2*i,2)} offset:{buf+1024*i}")
        a("s_waitcnt lgkmcnt(0)\ns_barrier")
        for e in range(2): a(f"ds_read_b128 {vr(X+4*e,4)}, v5 offset:{buf+1024*e}")
    a("s_waitcnt vmcnt(2)")
    a(f"v_mov_b32 v127, v2")
    stage(0, F16C, F16S, True, False); stage(1, F16C, F16S, True, False)
    for e in range(2):
        twiddle(a, DR(e), DI(e), T1R+4*e, T1I+4*e, T, X+4*e)
        stage(e, G2C+4*e, G2S+4*e, False, False)
    exch(0, False)
    a("s_waitcnt vmcnt(0)")
    for x in range(8):
        a(f"v_lshlrev_b32 v{T1R+x}, 16, v{W+x}\nv_and_b32 v{T1I+x}, 0xffff0000, v{W+x}")
    for e in range(2):
        a(f"s_waitcnt lgkmcnt({1-e})"); stage(e, F8C, F8S, False, False)
    for e in range(2):
        twiddle(a, DR(e), DI(e), T1R+4*e, T1I+4*e, T, X+4*e, swap=True)
        stage(e, F8C, F8S, False, True)
    exch(8192, True)
    for e in range(2):
        a(f"s_waitcnt lgkmcnt({1-e})"); stage(e, H2C+4*e, H2S+4*e, True, True)
    for e in range(2):
        twiddle(a, DR(e), DI(e), T2R+4*e, T2I+4*e, T, X+4*e, swap=True)
        stage(e, F16C, F16S, False, True)
    for e in range(2):
        for i in range(4): cvt(a, W+4*e+i, f"v{DR(e)+i}", f"v{DI(e)+i}")
        a(f"global_store_dwordx4 v3, {vr(W+4*e,4)}, s[46:47] offset:{16*e}")
    stamp_end(a, 1, 8)
    a("s_endpgm\nFT_end:")
    return 128

def role_b3(a, first):
    a("B3:")
    prefetch(a, "B3", 1, 7)
    unit_decode(a, first)
    R = 8
    FA, FB = 32, 48
    CR, CI = 64, 88
    TAR, TAI, TBR, TBI = 112, 116, 120, 124
    EA, EL, EH = 128, 132, 136
    AD = 140
    T = 144
    D = 156
    a(f"""v_min_u32 v5, 12, v3
    v_mul_u32_u24 v6, 144, v4
    v_add_u32 v5, v5, v6                ; k1 + 144 g
    v_sub_u32 v6, 576, v5
    v_cmp_gt_u32 vcc, 2, v4
    v_mov_b32 v{T}, {24*8192}
    v_mov_b32 v{T+1}, {-24*8192 & 0xffffffff}
    v_cndmask_b32 v5, v6, v5, vcc
    v_cndmask_b32 v6, v{T+1}, v{T}, vcc
    v_lshl_add_u32 v5, v5, 13, s45
    v_cndmask_b32 v{T+8}, -1.0, 1.0, vcc    ; sgn
    s_waitcnt lgkmcnt(0)
    s_add_u32 s48, s12, {WS_Y1}
    s_addc_u32 s49, s13, 0""")
    for s_ in range(6):
        a(f"global_load_dwordx4 {vr(R+4*s_,4)}, v5, s[48:49]")
        if s_ < 5: a("v_add_u32 v5, v5, v6")
    srd(a, 52, 8, 0, 2048*2304)
    A_ = D; CO = D+8; SI = D+16
    a(f"""v_cmp_gt_u32 vcc, 8, v3
    v_cvt_f32_u32 v{T}, v3                ; rho
    v_and_b32 v{T+1}, 7, v3
    v_cndmask_b32 v{T+9}, 0, -1, vcc
    v_add_u32 v{T+1}, 16, v{T+1}
    v_cvt_f32_u32 v{T+1}, v{T+1}           ; 16+(rho&7)
    v_not_b32 v{T+10}, v{T+9}
    v_mul_u32_u24 v{T+2}, 6, v4
    v_cvt_f32_u32 v{T+2}, v{T+2}           ; 6g
    v_lshlrev_b32 v{T+3}, 2, v4
    v_cvt_f32_u32 v{T+3}, v{T+3}           ; 4g""")
    for x in (FB+2, FB+3, FB+6, FB+7, FB+10, FB+11, FB+14, FB+15): a(f"v_mov_b32 v{x}, 0")
    for base in (CR, CI):
        for blk in range(3): a(f"v_mov_b32 v{base+8*blk+6}, 0\nv_mov_b32 v{base+8*blk+7}, 0")
    ST = T+4
    for col, blk in ((T, 0), (T+1, 1)):
        a(f"v_mul_f32 v{ST}, {f32hex(1/24)}, v{col}\nv_mul_f32 v{A_}, v{ST}, v{T+2}")
        for j in range(1, 6): a(f"v_add_f32 v{A_+j}, v{A_+j-1}, v{ST}")
        for j in range(6): a(f"v_cos_f32 v{CO+j}, v{A_+j}\nv_sin_f32 v{SI+j}, v{A_+j}")
        for j in range(6):
            a(f"v_mul_f32 v{A_}, v{T+8}, v{SI+j}\nv_mul_f32 v{A_+1}, v{T+8}, v{CO+j}")
            cvt(a, CR+8*blk+j, f"v{CO+j}", f"-v{A_}"); cvt(a, CI+8*blk+j, f"v{SI+j}", f"v{A_+1}")
    for base in (CR, CI):
        for j in range(6): a(f"v_and_b32 v{base+16+j}, v{T+10}, v{base+8+j}\nv_and_b32 v{base+8+j}, v{T+9}, v{base+8+j}")
    def angles4(st):
        a(f"v_mul_f32 v{A_}, v{st}, v{T+3}\nv_add_f32 v{A_+1}, v{A_}, v{st}\nv_fma_f32 v{A_+2}, 2.0, v{st}, v{A_}\nv_add_f32 v{A_+3}, v{A_+2}, v{st}")
    sc = f32hex(1.0/(2048*576))
    for col, tr, ti in ((T, TAR, TAI), (T+1, TBR, TBI)):
        a(f"v_mul_f32 v{ST}, {f32hex(1/576)}, v{col}"); angles4(ST)
        for j in range(4): a(f"v_cos_f32 v{tr+j}, v{A_+j}\nv_sin_f32 v{ti+j}, v{A_+j}")
        for j in range(4): a(f"v_mul_f32 v{tr+j}, {sc}, v{tr+j}\nv_mul_f32 v{ti+j}, {sc}, v{ti+j}")
    a(f"""v_cmp_eq_u32 vcc, 3, v4
    v_cmp_eq_u32 s[60:61], 0, v4
    v_cndmask_b32 v{T+6}, 2.0, 0, vcc
    s_or_b64 vcc, vcc, s[60:61]
    s_nop 1
    v_cndmask_b32 v{T+5}, 2.0, 1.0, vcc""")
    for col, dst in ((T, EA), (T+1, EL)):
        a(f"v_mul_f32 v{ST}, {f32hex(1/24)}, v{col}"); angles4(ST)
        for j in range(4): a(f"v_cos_f32 v{CO+j}, v{A_+j}\nv_sin_f32 v{SI+j}, -v{A_+j}")
        for j in range(4):
            wg = T+5 if j == 0 else T+6
            a(f"v_mul_f32 v{CO+j}, v{wg}, v{CO+j}\nv_mul_f32 v{SI+j}, v{wg}, v{SI+j}")
        for j in range(4): cvt(a, dst+j, f"v{CO+j}", f"v{SI+j}")
    for j in range(4): a(f"v_and_b32 v{EH+j}, v{T+10}, v{EL+j}\nv_and_b32 v{EL+j}, v{T+9}, v{EL+j}")
    RS = 128*2304
    a(f"""s_mul_i32 s47, s42, 2304
    s_add_u32 s47, s47, 1152
    s_mov_b32 s61, {RS}
    s_mov_b32 s62, {2*RS}
    s_mov_b32 s63, {3*RS}
    v_mul_u32_u24 v{T}, 48, v3
    v_add_u32 v{T}, s47, v{T}             ; + 48 rho
    v_lshl_add_u32 v{AD}, v4, 3, v{T}     ; A_i
    v_and_b32 v{T+1}, 1, v4
    v_lshlrev_b32 v{T+1}, 3, v{T+1}
    v_lshrrev_b32 v{T+2}, 1, v4
    v_mul_lo_u32 v{T+2}, v{T+2}, s61
    v_add3_u32 v{T+1}, v{T+1}, v{T+2}, 32   ; 32 + 8(g&1) + (g>>1)*RS
    v_add_u32 v{AD+1}, v{T}, v{T+1}
    v_and_b32 v{T}, 7, v3
    v_mul_u32_u24 v{T}, 48, v{T}
    s_add_u32 s47, s47, 768
    v_add_u32 v{T}, s47, v{T}             ; d1 = 16 + (rho&7)
    v_lshrrev_b32 v{T+2}, 3, v3
    v_mul_lo_u32 v{T+2}, v{T+2}, s61
    v_add_u32 v{T+3}, v{T}, v{T+2}
    v_lshl_add_u32 v{AD+2}, v4, 3, v{T+3}
    v_add3_u32 v{AD+3}, v{T+3}, v{T+2}, v{T+1}""")
    a("s_waitcnt vmcnt(2)")
    for i in range(4):
        for s_ in range(4): a(f"v_mov_b32 v{FA+4*i+s_}, v{R+4*s_+i}")
    a("s_waitcnt vmcnt(0)")
    for i in range(4):
        for s_ in range(2): a(f"v_mov_b32 v{FB+4*i+s_}, v{R+16+4*s_+i}")
    def st1(i):
        p = i >> 1; tA = 3*p + (i & 1); tB = 3*p + 2; blk = 1 + (i & 1)
        for c, o in ((CR, 0), (CI, 4)):
            a(f"{MF16} {vr(D+8*tA+o,4)}, {vr(FA+4*i,4)}, {vr(c,4)}, 0")
            a(f"{MF16} {vr(D+8*tB+o,4)}, {vr(FA+4*i,4)}, {vr(c+8*blk,4)}, {'0' if (i & 1) == 0 else vr(D+8*tB+o,4)}")
        for c, o in ((CR, 0), (CI, 4)):
            a(f"{MF16} {vr(D+8*tA+o,4)}, {vr(FB+4*i,4)}, {vr(c+4,4)}, {vr(D+8*tA+o,4)}")
            a(f"{MF16} {vr(D+8*tB+o,4)}, {vr(FB+4*i,4)}, {vr(c+8*blk+4,4)}, {vr(D+8*tB+o,4)}")
    P = R
    def tw(t):
        isB = t in (2, 5)
        twiddle(a, D+8*t, D+8*t+4, TBR if isB else TAR, TBI if isB else TAI, T, P+4*t)
    OA = CR
    OB = CR + 24
    def st2(t):
        a(f"{MF16} {vr(OA+4*t,4)}, {vr(P+4*t,4)}, {vr(EA,4)}, 0")
        m = {0: (0, EL, 0), 1: (0, EH, 1), 3: (1, EL, 0), 4: (1, EH, 1), 2: (2, EL, 0), 5: (2, EH, 1)}[t]
        a(f"{MF16} {vr(OB+4*m[0],4)}, {vr(P+4*t,4)}, {vr(m[1],4)}, {vr(OB+4*m[0],4) if m[2] else '0'}")
    st1(0); st1(1); st1(2); tw(0); st1(3); tw(1); tw(2); tw(3); st2(0); st2(1); tw(4); st2(2); st2(3); tw(5); st2(4); st2(5)
    outs = [(OA+0, AD, "0"), (OA+4, AD, "s61"), (OB+0, AD+2, "0"), (OA+8, AD+1, "0"), (OA+12, AD, "s62"), (OA+16, AD, "s63"),
            (OB+4, AD+2, "s62"), (OA+20, AD+1, "s62"), (OB+8, AD+3, "0")]
    for n, (o, ad, so) in enumerate(outs):
        dd = FA + 2*n
        cvt(a, dd, f"v{o}", f"v{o+1}"); cvt(a, dd+1, f"v{o+2}", f"v{o+3}")
        a(f"buffer_store_dwordx2 {vr(dd,2)}, v{ad}, s[52:55], {so} offen")
    stamp_end(a, 2, 12)
    a("s_endpgm\nB3_end:")
    return D + 48

def role_yt(a, first):
    a("YT:")
    prefetch(a, "YT", 1, 7)
    a(f"""v_lshrrev_b32 v2, 6, v0
    v_and_b32 v1, 63, v0
    v_readfirstlane_b32 s40, v2
    s_sub_u32 s41, s2, {first}
    s_lshr_b32 s42, s41, 4              ; cb
    s_and_b32 s41, s41, 15
    s_lshl_b32 s41, s41, 2
    s_add_u32 s41, s41, s40             ; lb
    s_lshl_b32 s43, s42, 18
    s_lshl_b32 s44, s41, 6
    s_add_u32 s43, s43, s44
    v_lshrrev_b32 v3, 2, v1
    v_lshlrev_b32 v3, 12, v3
    v_and_b32 v4, 3, v1
    v_lshl_add_u32 v3, v4, 4, v3
    v_add_u32 v3, s43, v3               ; src
    s_lshl_b32 s45, s40, 12
    v_and_b32 v5, 15, v1
    v_lshrrev_b32 v6, 4, v1
    v_lshrrev_b32 v8, 2, v5
    v_lshl_add_u32 v8, v6, 3, v8
    v_lshlrev_b32 v8, 6, v8
    v_and_b32 v9, 3, v5
    v_lshl_add_u32 v8, v9, 3, v8
    v_add_u32 v8, s45, v8
    s_mul_i32 s46, s41, {32*2304}
    s_lshl_b32 s47, s42, 7
    s_add_u32 s46, s46, s47
    v_mul_u32_u24 v9, 2304, v5
    v_lshl_add_u32 v9, v6, 4, v9
    v_add_u32 v9, s46, v9               ; dst
    s_mov_b32 s61, 65536
    s_mov_b32 s62, 131072
    s_mov_b32 s63, 196608
    s_mov_b32 s64, {16*2304}
    s_waitcnt lgkmcnt(0)""")
    srd(a, 48, 12, WS_YT, 576*4096); srd(a, 52, 8, 0, 2048*2304)
    for j in range(4):
        a("s_mov_b32 m0, s45" if j == 0 else "s_add_u32 m0, m0, 1024")
        a(f"buffer_load_dwordx4 v3, s[48:51], {'0' if j == 0 else 's%d' % (60+j)} offen lds")
    a("s_waitcnt vmcnt(0)")
    for x in range(4):
        H, lh = x >> 1, x & 1
        a(f"ds_read_b64_tr_b16 {vr(16+4*x,2)}, v8 offset:{2048*H+32*lh}\nds_read_b64_tr_b16 {vr(18+4*x,2)}, v8 offset:{2048*H+32*lh+256}")
    for x in range(4):
        H, lh = x >> 1, x & 1
        a(f"s_waitcnt lgkmcnt({6-2*x})\nbuffer_store_dwordx4 {vr(16+4*x,4)}, v9, s[52:55], {'s64' if lh else '0'} offen offset:{64*H}")
    stamp_end(a, 2, 12)
    a("s_endpgm\nYT_end:")
    return 32

def kd(name, nv, ns=96):
    nv = (nv + 7) & ~7
    return f""".p2align 6
.amdhsa_kernel {name}
  .amdhsa_next_free_vgpr {nv}
  .amdhsa_next_free_sgpr {ns}
  .amdhsa_accum_offset {nv}
  .amdhsa_group_segment_fixed_size 0
  .amdhsa_kernarg_size 120
  .amdhsa_user_sgpr_count 2
  .amdhsa_user_sgpr_kernarg_segment_ptr 1
  .amdhsa_system_sgpr_workgroup_id_x 1
.end_amdhsa_kernel"""
def head(a, name):
    a.l += [f".globl {name}", ".p2align 8", f".type {name},@function", f"{name}:"]
    stamp_start(a)

a = A()
N_KG, N_B1, N_WT, N_UT = 288, 128, 145, 144
head(a, "k1_kernel")
a(f"""s_load_dwordx16 s[8:23], s[0:1], 0
s_load_dwordx8 s[24:31], s[0:1], 64
s_load_dwordx2 s[32:33], s[0:1], 112
s_cmp_lt_u32 s2, {N_KG}
s_cbranch_scc1 KG
s_cmp_lt_u32 s2, {N_KG+N_B1}
s_cbranch_scc1 B1
s_cmp_lt_u32 s2, {N_KG+N_B1+N_WT}
s_cbranch_scc1 WT
s_cmp_lt_u32 s2, {N_KG+N_B1+N_WT+N_UT}
s_cbranch_scc1 UT
s_endpgm""")
nv1 = max(role_kg(a), role_b1(a, N_KG), role_wt(a, N_KG+N_B1), role_ut(a, N_KG+N_B1+N_WT), 128)
head(a, "k2_kernel")
a(f"""s_load_dwordx2 s[8:9], s[0:1], 112
s_mov_b32 s41, s2
s_cmp_lt_u32 s2, 512
s_cbranch_scc1 CV
s_sub_u32 s41, s2, 512
s_cmp_lt_u32 s2, 704
s_cbranch_scc1 FT
s_sub_u32 s41, s2, 192
s_cmp_lt_u32 s2, 768
s_cbranch_scc1 CV
s_sub_u32 s41, s2, 576
s_cmp_lt_u32 s2, 865
s_cbranch_scc1 FT
s_endpgm""")
nv2 = max(role_conv(a), role_fft(a), 128)
head(a, "k3_kernel")
a(f"""s_load_dwordx2 s[8:9], s[0:1], 96
s_load_dwordx2 s[12:13], s[0:1], 112
s_cmp_lt_u32 s2, 128
s_cbranch_scc1 B3
s_cmp_lt_u32 s2, 272
s_cbranch_scc1 YT
s_endpgm""")
nv3 = max(role_b3(a, 0), role_yt(a, 128))
body, tot = pad(a.l)
hdr = f"""; S4 long-conv (Toeplitz MFMA) + GFNet 2D spectral filter (MFMA FFT), 3 launches. Generated by gen.py (own generator).
; @launch kernel=k1_kernel grid=({N_KG+N_B1+N_WT+N_UT},1,1) block=(256,1,1) lds=34816
; @launch kernel=k2_kernel grid=(865,1,1) block=(256,1,1) lds=36864
; @launch kernel=k3_kernel grid=(272,1,1) block=(256,1,1) lds=16384
.amdgcn_target "amdgcn-amd-amdhsa--gfx950"
.text
"""
out = hdr + "\n".join(body) + '\n.section .rodata,"a"\n' + "\n".join([kd("k1_kernel", nv1), kd("k2_kernel", nv2), kd("k3_kernel", nv3)]) + "\n"
open(sys.argv[1], "w").write(out)
print("vgprs", nv1, nv2, nv3, "nop states inserted", tot)
```

```python
import sys, math
import numpy as np
from asmlib import *
OPT = dict(a.split("=") if "=" in a else (a, "1") for a in sys.argv[2:])
STAMP = int(OPT.get("stamp", 0))
KNAME = "concat_heads__ssm_conv_s4__spectral_gfnet__prompt_kernel"
WS_X1 = 0x000000; WS_WT = 0x250000; WS_Y1 = 0x4A0000; WS_N = 0x6F0000
WS_STAMP = 0x1000000
COLB = 289*8192
LOG2E = 1.4426950408889634
MF16 = "v_mfma_f32_16x16x32_bf16"; MF32 = "v_mfma_f32_32x32x16_bf16"
NB = 112
TMO = 3000
def bf(x):
    u = np.asarray(x, np.float32).view(np.uint32) if np.ndim(x) else np.array([x], np.float32).view(np.uint32)
    return ((u + 0x7FFF + ((u >> 16) & 1)) >> 16).astype(np.uint32)
def pk(lo, hi): return bf(np.asarray(lo, np.float64).astype(np.float32)) | (bf(np.asarray(hi, np.float64).astype(np.float32)) << 16)
def f32(x): return np.asarray(x, np.float64).astype(np.float32).view(np.uint32)
L = np.arange(64); RHO = L & 15; G = L >> 4
C = lambda rev: np.cos(2*np.pi*rev); S = lambda rev: np.sin(2*np.pi*rev)
def quad(f): return np.stack([np.asarray(f(i), np.uint32) for i in range(4)], axis=1)
def swz(kk): return kk*64 + ((kk >> 2) & 3)*16
def tab_b1():
    q = []
    d1 = lambda j: 4*G + j if j < 4 else 16 + 4*(G & 1) + (j - 4)
    m = lambda j: np.ones(64) if j < 4 else (G < 2)*1.0
    q.append(quad(lambda i: pk(C(d1(2*i)*RHO/24)*m(2*i), C(d1(2*i+1)*RHO/24)*m(2*i+1))))
    q.append(quad(lambda i: pk(-S(d1(2*i)*RHO/24)*m(2*i), -S(d1(2*i+1)*RHO/24)*m(2*i+1))))
    dA = lambda i: 4*G + i
    dB = lambda i: 16 + 4*(G & 1) + i
    for d in (dA, dB):
        q.append(quad(lambda i: f32(C(RHO*d(i)/576)))); q.append(quad(lambda i: f32(-S(RHO*d(i)/576))))
    for d, mk in ((dA, np.ones(64)), (dB, (G < 2)*1.0), (dB, (G >= 2)*1.0)):
        for tau in range(3):
            k2 = 8*tau + (RHO >> 1); ph = (RHO & 1)*np.where(k2 < 12, 0.25, -0.25)
            q.append(quad(lambda i: pk(mk*C(d(i)*k2/24 + ph), mk*S(d(i)*k2/24 + ph))))
    ra0 = (4*G + (RHO >> 2))*48 + (RHO & 3)*8; ra1 = (16 + 4*(G & 1) + (RHO >> 2))*48 + (RHO & 3)*8
    ex = ((RHO & 3) >> 1)*1152 + 32 + (RHO & 1)*8 - (RHO & 3)*8
    q.append(np.stack([ra0, ra1, ra0 + ex, ra1 + ex], axis=1).astype(np.uint32))
    ad = []
    for tau in range(3):
        for o in range(2):
            k2 = 8*tau + 2*G + o; k = np.minimum(RHO, 12) + 24*k2
            ad.append(swz(np.where(k2 < 12, k, 576 - k)))
    ad += [0*L, 0*L]
    q.append(np.stack(ad[:4], axis=1).astype(np.uint32)); q.append(np.stack(ad[4:], axis=1).astype(np.uint32))
    return np.stack(q)
def tab_ft():
    def cs(rev, mk=1.0):
        return [quad(lambda i: pk(mk*C(rev(i)), mk*S(rev(i)))), quad(lambda i: pk(-mk*S(rev(i)), mk*C(rev(i))))]
    q = cs(lambda i: RHO*(4*G + i)/16)
    q += cs(lambda i: (RHO & 7)*(4*(G & 1) + i)/8, ((RHO >> 3) == (G >> 1))*1.0)
    for w in range(4):
        for e in range(2):
            c = 2*w + e
            q += [quad(lambda i: f32(C(RHO*(8*(4*G + i) + c)/2048))), quad(lambda i: f32(-S(RHO*(8*(4*G + i) + c)/2048)))]
            q += cs(lambda i: RHO*(8*(4*G + i) + c)/128)
    for w in range(4):
        for e in range(2):
            c = 2*w + e
            q += cs(lambda i: (4*G + i)*(8*RHO + c)/128)
            q += [quad(lambda i: f32(C((4*G + i)*(8*RHO + c)/2048))), quad(lambda i: f32(S((4*G + i)*(8*RHO + c)/2048)))]
    return np.stack(q)
RS = 128*2304
def tab_b3():
    q = []
    sg = np.where(G < 2, 1.0, -1.0)
    cols = ((RHO, np.ones(64)), (16 + (RHO & 7), (RHO < 8)*1.0), (16 + (RHO & 7), (RHO >= 8)*1.0))
    for im in range(2):
        for d2, mk in cols:
            for st in range(2):
                def f(i):
                    s_ = 4*st + i
                    if s_ >= 6: return np.zeros(64, np.uint32)
                    rev = d2*(6*G + s_)/24
                    return pk(mk*S(rev), mk*sg*C(rev)) if im else pk(mk*C(rev), -mk*sg*S(rev))
                q.append(quad(f))
    sc = 1.0/(2048*576)
    for d2, _ in cols[:2]:
        q.append(quad(lambda i: f32(sc*C(d2*(4*G + i)/576)))); q.append(quad(lambda i: f32(sc*S(d2*(4*G + i)/576))))
    for d1, mk in cols:
        def f(i):
            k1 = 4*G + i; wg = np.where((k1 == 0) | (k1 == 12), 1.0, np.where(k1 > 12, 0.0, 2.0))*mk
            return pk(wg*C(d1*k1/24), -wg*S(d1*k1/24))
        q.append(quad(f))
    ad = []
    for s_ in range(6):
        k = np.minimum(RHO, 12) + 24*(6*G + s_)
        ad.append(swz(np.where(G < 2, k, 576 - k)))
    xB = 32 + 8*(G & 1) + (G >> 1)*RS
    hi = 768 + 48*(RHO & 7)
    ad += [48*RHO + 8*G, 48*RHO + xB]
    q.append(np.stack(ad[:4], axis=1).astype(np.uint32)); q.append(np.stack(ad[4:], axis=1).astype(np.uint32))
    q.append(np.stack([hi + (RHO >> 3)*RS + 8*G, np.where(RHO < 8, hi + xB, 0x40000000), 0*L, 0*L], axis=1).astype(np.uint32))
    return np.stack(q)
TB1, TFT, TB3 = tab_b1(), tab_ft(), tab_b3()
NQ1, NQF, NQ3 = len(TB1), len(TFT), len(TB3)
assert (NQ1, NQF, NQ3) == (18, 68, 22)
L_FT = 0; L_B1 = 69632; L_X = 88064; L_R = 124928; L_EX = 69632; L_B3 = 4096; RU = 18496
CP = 5216; CS = 4*CP; L_CH = 64; L_KG = L_CH + 4*CS; PP = 36864
LDS = 163840

def cmul(a, o, x, y, conj=False):
    a(f"v_pk_mul_f32 {vr(o,2)}, {vr(x,2)}, {vr(y,2)} op_sel:[0,0] op_sel_hi:[1,0]")
    a(f"v_pk_fma_f32 {vr(o,2)}, {vr(x,2)}, {vr(y,2)}, {vr(o,2)} op_sel:[1,1,0] op_sel_hi:[0,1,1] {'neg_hi' if conj else 'neg_lo'}:[1,0,0]")
def cvt(a, d, lo, hi): a(f"v_cvt_pk_bf16_f32 v{d}, {lo}, {hi}")
def srd(a, s, base, off, nrec):
    if off == 0: a(f"s_mov_b32 s{s}, s{base}\ns_mov_b32 s{s+1}, s{base+1}")
    else: a(f"s_add_u32 s{s}, s{base}, {off}\ns_addc_u32 s{s+1}, s{base+1}, 0")
    a(f"s_mov_b32 s{s+2}, {nrec}\ns_mov_b32 s{s+3}, 0x20000")
def mark(a, i):
    if STAMP: a(f"s_memtime s[{78+2*i}:{79+2*i}]")
def stamp_start(a):
    if STAMP:
        a("s_memrealtime s[96:97]\ns_memtime s[76:77]")
        for i in range(8): a(f"s_mov_b64 s[{78+2*i}:{79+2*i}], 0")
def stamp_end(a):
    if not STAMP: return
    a(f"""s_waitcnt vmcnt(0) lgkmcnt(0)
    s_memrealtime s[98:99]
    s_memtime s[94:95]
    s_mov_b64 exec, -1
    s_lshl_b32 s100, s2, 4
    s_add_u32 s100, s100, s40
    s_lshl_b32 s100, s100, 6
    s_add_u32 s100, s100, {WS_STAMP}
    v_mov_b32 v1, s100
    s_waitcnt lgkmcnt(0)
    v_mov_b32 v2, s96
    v_mov_b32 v3, s98""")
    for i in range(9): a(f"s_sub_u32 s{78+2*i}, s{78+2*i}, s76\nv_mov_b32 v{4+i}, s{78+2*i}")
    a("""v_mov_b32 v13, s73
    s_mov_b64 exec, 1
    global_store_dwordx4 v1, v[2:5], s[32:33]
    global_store_dwordx4 v1, v[6:9], s[32:33] offset:16
    global_store_dwordx4 v1, v[10:13], s[32:33] offset:32""")
def twiddle(a, dr, di, tr, ti, t, P, swap=False, step=1):
    for h in (0, 2):
        a(f"v_pk_mul_f32 {vr(t+2*h,2)}, {vr(dr+h,2)}, {vr(tr+h,2)}")
        a(f"v_pk_mul_f32 {vr(t+2*h+2,2)}, {vr(dr+h,2)}, {vr(ti+h,2)}")
    for h in (0, 2):
        a(f"v_pk_fma_f32 {vr(t+2*h,2)}, {vr(di+h,2)}, {vr(ti+h,2)}, {vr(t+2*h,2)} neg_lo:[1,0,0] neg_hi:[1,0,0]")
        a(f"v_pk_fma_f32 {vr(t+2*h+2,2)}, {vr(di+h,2)}, {vr(tr+h,2)}, {vr(t+2*h+2,2)}")
    for i in range(4):
        re = t + 2*(i & 2) + (i & 1); im = re + 2
        cvt(a, P + i*step, f"v{im if swap else re}", f"v{re if swap else im}")
def make_tags(a, E, t):
    a(f"v_and_b32 v{t}, 3, v0\nv_lshlrev_b32 v{t}, 3, v{t}\nv_lshrrev_b32 v{t}, v{t}, s34")
    a(f"v_mul_u32_u24 v{t}, 0x8001, v{t}".replace("v_mul_u32_u24", "v_and_b32").replace("0x8001", "0xff"))
    a(f"v_lshl_or_b32 v{t}, v{t}, 15, v{t}")
    for i in range(4):
        a(f"v_lshrrev_b32 v{E+i}, {2*i}, v{t}\nv_and_b32 v{E+i}, 0x10001, v{E+i}")
    a("s_mov_b32 s35, 0xfffefffe")
def tag_in(a, d, E):
    for i in range(4): a(f"v_and_or_b32 v{d+i}, v{d+i}, s35, v{E+i}")
def tag_chk(a, acc, quads, E):
    first = True
    for d in quads:
        for i in range(4):
            if first: a(f"v_xor_b32 v{acc}, v{d+i}, v{E+i}"); first = False
            else: a(f"v_bitop3_b32 v{acc}, v{acc}, v{d+i}, v{E+i} bitop3:0xf6")

def role_a(a):
    a("RA:")
    a(f"""s_sub_u32 s41, s2, {NB}
    s_lshr_b32 s41, s41, 3
    s_and_b32 s42, s2, 7
    s_mul_i32 s42, s42, 18
    s_add_u32 s41, s41, s42             ; j : channels 4j..4j+3
    s_cmp_ge_u32 s40, 8
    s_cbranch_scc1 GW""")
    a(f"""v_mov_b32 v10, 0
    v_mov_b32 v11, 0
    v_mov_b32 v12, 0
    v_mov_b32 v13, 0
    v_mov_b32 v14, 0
    v_mov_b32 v15, 0
    s_lshr_b32 s46, s40, 1
    s_and_b32 s42, s40, 1               ; hf
    s_lshl_b32 s43, s41, 10
    s_lshl_b32 s44, s40, 7
    s_add_u32 s43, s43, s44
    v_lshl_add_u32 v3, v1, 1, s43
    s_lshl_b32 s45, s41, 3
    s_and_b32 s44, s40, 4
    s_add_u32 s45, s45, s44
    s_mul_i32 s47, s40, 8704
    s_add_u32 s47, s47, {L_KG}
    s_waitcnt lgkmcnt(0)
    global_load_short_d16_hi v10, v3, s[10:11]
    global_load_short_d16_hi v11, v3, s[12:13]
    global_load_short_d16_hi v12, v3, s[14:15]
    global_load_short_d16_hi v13, v3, s[16:17]
    global_load_short_d16_hi v14, v3, s[18:19]
    global_load_short_d16_hi v15, v3, s[20:21]
    s_load_dword s48, s[22:23], s45
    s_load_dword s49, s[24:25], s45""")
    mark(a, 0)
    a(f"""v_lshl_add_u32 v4, v1, 2, s47
    v_and_b32 v5, 31, v1               ; r
    v_lshrrev_b32 v6, 5, v1            ; h
    v_mul_u32_u24 v7, 272, v5
    v_lshl_add_u32 v7, v6, 4, v7
    v_add_u32 v7, s47, v7
    s_mul_i32 s50, s46, {CS}
    s_add_u32 s50, s50, {L_CH}
    v_lshlrev_b32 v8, 4, v5
    v_lshlrev_b32 v9, 9, v6
    v_add_u32 v8, v8, v9
    v_add_u32 v9, v8, v9
    s_add_u32 s51, s50, {3056 - 2}
    v_sub_u32 v8, s51, v8
    s_add_u32 s51, s50, {1520 - 2}
    v_sub_u32 v9, s51, v9
    v_mov_b32 v20, 0
    v_mov_b32 v21, 0
    v_mov_b32 v22, 0
    v_mov_b32 v23, 0
    s_cmp_eq_u32 s42, 0
    s_cselect_b32 s51, 4080, 0
    s_cselect_b32 s52, 0, {2*CP}
    s_add_u32 s51, s51, s52
    s_add_u32 s51, s51, s50
    v_mul_u32_u24 v16, {CP}, v6
    v_min_u32 v17, 27, v5
    v_lshl_add_u32 v16, v17, 4, v16
    v_add_u32 v16, s51, v16
    v_mov_b32 v17, s50
    ds_write_b128 v16, v[20:23]
    ds_write_b32 v17, v20 offset:{3*CP + 448}
    s_waitcnt lgkmcnt(0)
    s_lshl_b32 s52, s48, 16
    s_and_b32 s48, s48, 0xffff0000
    s_lshl_b32 s53, s49, 16
    s_and_b32 s49, s49, 0xffff0000
    s_bitcmp0_b32 s40, 1
    s_cselect_b32 s48, s52, s48        ; log_dt
    s_cselect_b32 s49, s53, s49        ; Dskip
    v_mov_b32 v16, {f32hex(LOG2E)}
    v_mul_f32 v17, s48, v16
    v_exp_f32 v17, v17
    v_cmp_eq_u32 vcc, 0, v1
    v_mov_b32 v18, s49
    v_cvt_pk_bf16_f32 v17, v17, v17
    v_cndmask_b32 v18, 0, v18, vcc
    v_and_b32 v17, 0xffff0000, v17     ; dt
    v_mul_f32 v16, v17, v16
    v_mul_f32 v19, 0.15915494, v17
    s_waitcnt vmcnt(4)
    v_mul_f32 v20, v16, v10
    v_mul_f32 v21, v19, v11""")
    Z1, Z8, Z256 = 22, 24, 26
    a(f"v_mul_f32 v28, {f32hex(8.0)}, v20\nv_mul_f32 v29, {f32hex(8.0)}, v21\nv_mul_f32 v30, {f32hex(256.0)}, v20\nv_mul_f32 v31, {f32hex(256.0)}, v21")
    a("v_fract_f32 v29, v29\nv_fract_f32 v21, v21\nv_fract_f32 v31, v31")
    a("v_exp_f32 v28, v28\nv_cos_f32 v24, v29\nv_sin_f32 v25, v29")
    a("v_exp_f32 v20, v20\nv_cos_f32 v22, v21\nv_sin_f32 v23, v21")
    a("v_exp_f32 v30, v30\nv_cos_f32 v26, v31\nv_sin_f32 v27, v31")
    a("s_waitcnt vmcnt(0)"); mark(a, 1)
    a("""v_mul_f32 v32, v14, v12
    v_mul_f32 v33, v14, v13
    v_fma_f32 v32, -v15, v13, v32
    v_fma_f32 v33, v15, v12, v33
    v_mul_f32 v24, v24, v28
    v_mul_f32 v25, v25, v28
    v_mul_f32 v32, v32, v17
    v_mul_f32 v33, -v33, v17
    v_mul_f32 v22, v22, v20
    v_mul_f32 v23, v23, v20
    v_mul_f32 v26, v26, v30
    v_mul_f32 v27, v27, v30""")
    Zr = {1: Z1, 8: Z8, 256: Z256}; nxt = [36]
    colops = [("keep", e, x, y) for e, x, y in [(2,1,1),(512,256,256),(3,2,1),(4,2,2),(768,512,256),(1024,512,512),(5,4,1),(6,4,2),(7,4,3),(1280,1024,256),(1536,1024,512),(1792,1024,768)]]
    colops += [("tmp", e, x, y) for e, x, y in [(258,256,2),(260,256,4),(262,256,6),(264,256,8),(516,512,4),(520,512,8),(772,768,4),(776,768,8),(1032,1024,8),(1288,1280,8),(1544,1536,8),(1800,1792,8)]]
    for k, e, x, y in colops:
        if k == "keep": Zr[e] = nxt[0]; nxt[0] += 2
    TMP = nxt[0]; nxt[0] += 4
    PK = {}
    for e in [0,1,2,3,4,5,6,7,512,516,520,1024,1032,1280,1288,256,258,260,262,264,768,772,776,1536,1544,1792,1800]:
        PK[e] = nxt[0]; nxt[0] += 1
    CV = nxt[0]; nxt[0] += 2
    colq = [lambda: a(f"v_mov_b32 v{PK[0]}, 0x3f80")]
    for e in (1, 256): colq.append(lambda e=e: cvt(a, PK[e], f"v{Zr[e]}", f"v{Zr[e]+1}"))
    ti = 0
    for k, e, x, y in colops:
        o = Zr[e] if k == "keep" else TMP + 2*(ti & 1)
        if k != "keep": ti += 1
        colq.append(lambda o=o, x=x, y=y: cmul(a, o, Zr[x], Zr[y]))
        colq.append(lambda o=o, e=e: cvt(a, PK[e], f"v{o}", f"v{o+1}"))
    Q = [32, 34]
    for r in range(32):
        q = Q[r & 1]
        cvt(a, CV + (r & 1), f"v{q}", f"v{q+1}")
        if r < 31: cmul(a, Q[(r+1) & 1], q, Z8, conj=True)
        a(f"ds_write_b32 v4, v{CV + (r&1)} offset:{r*272}")
        for _ in range(2):
            if colq: colq.pop(0)()
    while colq: colq.pop(0)()
    mark(a, 2)
    FB = 20; ACC = 52; FA = (nxt[0] + 3) & ~3
    assert FA + 32 <= 128
    for ks in range(8): a(f"ds_read_b128 {vr(FB+4*ks,4)}, v7 offset:{32*ks}")
    slots = [[0,1,2,3,4,5,6,7,512,516,520,1024,1032,1280,1288],[256,256,258,260,260,260,262,264,768,772,776,1536,1544,1792,1800]]
    for h in range(2):
        for i, e in enumerate(slots[h]):
            a(f"ds_write_b32 v4, v{PK[e]} offset:{(8*(i >> 2) + 4*h + (i & 3))*272}")
    for ks in range(8): a(f"ds_read_b128 {vr(FA+4*ks,4)}, v7 offset:{32*ks}")
    a("v_lshl_add_u32 v10, v1, 4, s47")
    a(f"s_xor_b32 s54, s40, 1\ns_mul_i32 s54, s54, 8704\ns_add_u32 s54, s54, {L_KG}\nv_lshl_add_u32 v11, v1, 4, s54")
    for ks in range(8):
        a(f"s_waitcnt lgkmcnt({7-ks})")
        a(f"{MF32} {vr(ACC,16)}, {vr(FA+4*ks,4)}, {vr(FB+4*ks,4)}, {'0' if ks == 0 else vr(ACC,16)}")
    def kst(vaddr, reg, off):
        a(f"ds_write_b128 v{vaddr}, {vr(reg,4)} offset:{off + CP + 2}\nds_write_b128 v{vaddr}, {vr(reg,4)} offset:{off}")
    a("s_cmp_eq_u32 s42, 0\ns_cbranch_scc0 KG_odd\ns_nop 10")
    a(f"ds_write_b128 v10, {vr(ACC+8,4)}\nds_write_b128 v10, {vr(ACC+12,4)} offset:1024")
    a(f"v_add_f32 v{ACC}, v{ACC}, v18")
    a("s_waitcnt lgkmcnt(0)"); mark(a, 3); a("s_barrier")
    a(f"ds_read_b128 {vr(FB,4)}, v11\nds_read_b128 {vr(FB+4,4)}, v11 offset:1024\ns_waitcnt lgkmcnt(0)")
    for i in range(0, 8, 2): a(f"v_pk_add_f32 {vr(ACC+i,2)}, {vr(ACC+i,2)}, {vr(FB+i,2)}")
    for j in range(4): cvt(a, FA+j, f"v{ACC+7-2*j}", f"v{ACC+6-2*j}")
    kst(8, FA, 1024)
    a("s_branch CONV")
    a("KG_odd:\ns_nop 10")
    a(f"ds_write_b128 v10, {vr(ACC,4)}\nds_write_b128 v10, {vr(ACC+4,4)} offset:1024")
    a("v_and_b32 v12, 1, v1\nv_cmp_eq_u32 vcc, 0, v12")
    a("s_waitcnt lgkmcnt(0)"); mark(a, 3); a("s_barrier")
    a(f"ds_read_b128 {vr(FB,4)}, v11\nds_read_b128 {vr(FB+4,4)}, v11 offset:1024\ns_waitcnt lgkmcnt(0)")
    for i in range(0, 8, 2): a(f"v_pk_add_f32 {vr(ACC+8+i,2)}, {vr(ACC+8+i,2)}, {vr(FB+i,2)}")
    V = lambda i: f"v{ACC+i}"
    cvt(a, FA+0, V(10), V(10)); cvt(a, FA+1, V(9), V(9)); cvt(a, FA+2, V(9), V(8)); cvt(a, FA+3, V(8), V(8))
    kst(8, FA, 0)
    for q in range(2):
        v0_, v1_ = V(11+2*q), V(12+2*q); o = FA + 4 + 4*q
        a(f"v_cndmask_b32 v13, {v1_}, {v0_}, vcc")
        cvt(a, o, v1_, v1_); cvt(a, o+2, v0_, v0_); cvt(a, o+1, v1_, "v13"); cvt(a, o+3, v0_, v0_)
        kst(9, o, 512*(1-q))
    a("s_branch CONV")
    a("GW:")
    a(f"""v_subrev_u32 v2, 512, v0            ; tg
    s_lshl_b32 s42, s41, 3
    v_mul_u32_u24 v3, {4*1152}, v2
    v_add_u32 v3, s42, v3
    s_cmp_lt_u32 s41, 128
    s_cselect_b32 s43, 13, 0
    s_cmp_lt_u32 s40, s43
    s_cbranch_scc1 GW_wt
    s_waitcnt lgkmcnt(0)""")
    GU = 8
    for r in range(4): a(f"global_load_dwordx2 {vr(GU+2*r,2)}, v3, s[8:9] offset:{1152*r}")
    a("s_branch GW_g\nGW_wt:")
    a(f"""s_and_b32 s43, s41, 3               ; aq
    s_lshl_b32 s43, s43, 2
    s_lshr_b32 s44, s41, 4              ; tau
    s_lshl_b32 s44, s44, 4
    s_add_u32 s43, s43, s44
    s_bfe_u32 s44, s41, 0x10003         ; g>>1
    s_lshl_b32 s44, s44, 7
    s_add_u32 s43, s43, s44
    s_bfe_u32 s44, s41, 0x10002         ; g&1
    s_lshl_b32 s44, s44, 10
    s_add_u32 s43, s43, s44
    v_and_b32 v4, 3, v0
    v_add_u32 v5, s43, v4               ; m0
    v_mul_u32_u24 v5, 578, v5
    v_lshrrev_b32 v6, 2, v2             ; kq
    v_lshl_add_u32 v5, v6, 3, v5
    s_mov_b32 s61, {256*578}
    s_mov_b32 s62, {512*578}
    s_mov_b32 s63, {768*578}
    s_waitcnt lgkmcnt(0)""")
    srd(a, 44, 28, 0, 2048*578 + 8); srd(a, 48, 30, 0, 2048*578 + 8)
    WR, WI, WO, E = 16, 24, 32, 48
    for i in range(4):
        so = "0" if i == 0 else f"s{60+i}"
        a(f"buffer_load_dwordx2 {vr(WR+2*i,2)}, v5, s[44:47], {so} offen\nbuffer_load_dwordx2 {vr(WI+2*i,2)}, v5, s[48:51], {so} offen")
    for r in range(4): a(f"global_load_dwordx2 {vr(GU+2*r,2)}, v3, s[8:9] offset:{1152*r}")
    a(f"s_mov_b32 s35, {WS_N}\ns_load_dword s34, s[32:33], s35")
    srd(a, 52, 32, WS_WT, COLB)
    a(f"""s_lshl_b32 s43, s41, 6
    v_lshlrev_b32 v6, 15, v6
    v_lshl_add_u32 v6, v4, 4, v6
    v_add_u32 v6, s43, v6               ; dst
    s_mov_b32 s56, 0x05040100
    s_mov_b32 s57, 0x07060302
    s_movk_i32 s61, 8192
    s_movk_i32 s62, 16384
    s_movk_i32 s63, 24576
    s_waitcnt lgkmcnt(0)
    s_add_u32 s34, s34, 0x9e3779b9""")
    make_tags(a, E, 7)
    a("s_waitcnt vmcnt(4)"); mark(a, 1)
    for c in range(4):
        for i in range(4): a(f"v_perm_b32 v{WO+4*c+i}, v{WI+2*i+(c>>1)}, v{WR+2*i+(c>>1)}, s{56+(c&1)}")
        tag_in(a, WO+4*c, E)
        a(f"buffer_store_dwordx4 {vr(WO+4*c,4)}, v6, s[52:55], {'0' if c == 0 else 's%d' % (60+c)} offen sc1")
    a("s_waitcnt vmcnt(4)\ns_branch GW_h\nGW_g:\ns_mov_b32 s56, 0x05040100\ns_mov_b32 s57, 0x07060302\ns_waitcnt vmcnt(0)\nGW_h:")
    mark(a, 2)
    a(f"v_lshlrev_b32 v4, 3, v2\nv_add_u32 v4, {L_CH + 2*CP + 448}, v4")
    for c in range(4):
        o = 16 + 2*c
        a(f"v_perm_b32 v{o}, v{GU+2+(c>>1)}, v{GU+(c>>1)}, s{56+(c&1)}\nv_perm_b32 v{o+1}, v{GU+6+(c>>1)}, v{GU+4+(c>>1)}, s{56+(c&1)}")
        a(f"v_add_u32 v{24+c}, {c*CS + CP + 4}, v4")
        a(f"ds_write_b64 v4, {vr(o,2)} offset:{c*CS}\nds_write2_b32 v{24+c}, v{o}, v{o+1} offset0:0 offset1:1")
    a("s_waitcnt lgkmcnt(0)"); mark(a, 3); a("s_barrier")
    a("CONV:")
    a(f"""s_and_b32 s43, s40, 3
    s_lshr_b32 s44, s40, 2
    s_mul_i32 s45, s44, {CS}
    v_and_b32 v5, 15, v1
    v_lshrrev_b32 v6, 4, v1
    v_and_b32 v7, 1, v1
    v_lshrrev_b32 v8, 1, v5
    s_lshl_b32 s50, s43, 7
    s_sub_u32 s50, s45, s50
    s_add_u32 s51, s50, {L_CH + 4088 - 3584}
    v_mul_u32_u24 v12, {CP}, v7
    v_lshl_add_u32 v9, v6, 4, v12
    v_lshlrev_b32 v10, 3, v8
    v_sub_u32 v9, v9, v10
    v_add_u32 v9, s51, v9               ; A addr
    s_add_u32 s51, s50, {L_CH + 3*CP + 448}
    v_sub_u32 v10, s51, v12
    v_lshl_add_u32 v10, v8, 6, v10
    v_lshl_add_u32 v10, v6, 4, v10      ; B addr
    v_subrev_u32 v11, 64, v9
    v_subrev_u32 v12, 64, v10
    s_mul_i32 s51, s40, 9216
    v_mul_u32_u24 v13, 144, v8
    v_lshl_add_u32 v13, v6, 5, v13
    v_lshl_add_u32 v13, v7, 3, v13
    v_add_u32 v13, s51, v13
    v_lshrrev_b32 v14, 4, v0
    v_mul_u32_u24 v14, 144, v14
    v_lshl_add_u32 v14, v5, 3, v14
    v_add_u32 v15, {2*PP}, v14
    s_lshl_b32 s51, s41, 3
    v_mul_u32_u24 v2, {2*2304}, v0
    v_add_u32 v2, s51, v2
    s_waitcnt lgkmcnt(0)
    s_barrier""")
    mark(a, 4)
    ACC, FA, FB = 16, 48, 80
    first = {}
    def pairs(k, st):
        for x, b in [(k, b) for b in range(k)] + [(x, k) for x in range(k)] + [(k, k)]:
            t = x + b
            if t > 7: continue
            f = (st == 0) and t not in first
            first[t] = 1
            a(f"{MF16} {vr(ACC+4*t,4)}, {vr(FA+4*x,4)}, {vr(FB+4*b,4)}, {'0' if f else vr(ACC+4*t,4)}")
    for st in range(2):
        va, vb = (9, 10) if st == 0 else (11, 12)
        for k in range(8):
            a(f"ds_read_b64 {vr(FA+4*k,2)}, v{va} offset:{512*(7-k)}\nds_read_b64 {vr(FA+4*k+2,2)}, v{va} offset:{512*(7-k)+8}")
            a(f"ds_read_b128 {vr(FB+4*k,4)}, v{vb} offset:{512*k}")
            if k >= 4:
                a("s_waitcnt lgkmcnt(12)"); pairs(k-4, st)
        for kk in range(4, 8):
            a(f"s_waitcnt lgkmcnt({3*(7-kk)})"); pairs(kk, st)
    mark(a, 5)
    a("s_barrier")
    for t in range(8):
        a(f"ds_write_b64 v13, {vr(ACC+4*t,2)} offset:{1152*t}\nds_write_b64 v13, {vr(ACC+4*t+2,2)} offset:{1152*t+16}")
    a("s_waitcnt lgkmcnt(0)\ns_barrier")
    mark(a, 6)
    for c in range(4):
        for w in range(4): a(f"ds_read_b64 {vr(FA+8*c+2*w,2)}, v{14 + (c>>1)} offset:{(c&1)*PP + 9216*w}")
    for c in range(4):
        b = FA + 8*c
        a(f"s_waitcnt lgkmcnt({12-4*c})")
        a(f"v_pk_add_f32 {vr(b,2)}, {vr(b,2)}, {vr(b+2,2)}\nv_pk_add_f32 {vr(b+4,2)}, {vr(b+4,2)}, {vr(b+6,2)}\nv_pk_add_f32 {vr(b,2)}, {vr(b,2)}, {vr(b+4,2)}")
    for r in range(2):
        cvt(a, 16+2*r, f"v{FA+r}", f"v{FA+8+r}"); cvt(a, 17+2*r, f"v{FA+16+r}", f"v{FA+24+r}")
        a(f"global_store_dwordx2 v2, {vr(16+2*r,2)}, s[4:5] offset:{2304*r}")
    mark(a, 7)
    stamp_end(a)
    a("s_endpgm")

def role_b(a):
    a("RB:")
    E = 124
    a(f"""v_lshlrev_b32 v2, 4, v1             ; lane*16
    s_lshl_b32 s48, s40, 10
    v_add_u32 v5, s48, v2
    s_getpc_b64 s[36:37]
    RB_pc:
    s_add_u32 s36, s36, TAB_B1-RB_pc
    s_addc_u32 s37, s37, 0
    s_add_u32 m0, s48, {L_B1}
    s_add_u32 s38, s36, 16384
    s_addc_u32 s39, s37, 0
    global_load_lds_dwordx4 v5, s[36:37]
    s_cmp_lt_u32 s40, {NQ1-16}
    s_cbranch_scc0 RB_t1
    s_add_u32 m0, m0, 16384
    s_nop 0
    global_load_lds_dwordx4 v5, s[38:39]
    RB_t1:
    s_and_b32 s41, s40, 7               ; wv8
    s_lshr_b32 s42, s40, 3              ; half
    s_lshl_b32 s43, s42, 4
    s_add_u32 s43, s43, s2              ; U
    s_cmp_ge_u32 s2, 96
    s_cselect_b32 s44, 1, 0
    s_cmp_eq_u32 s42, 0
    s_cselect_b32 s44, 1, s44
    s_bfe_u32 s45, s43, 0x20002         ; g_u
    s_lshl_b32 s45, s45, 9
    s_and_b32 s46, s43, 3               ; bq
    s_lshl_b32 s46, s46, 5
    s_add_u32 s45, s45, s46
    s_lshr_b32 s46, s43, 4              ; c
    s_add_u32 s45, s45, s46
    s_lshr_b32 s46, s41, 1
    s_lshl_b32 s46, s46, 3
    s_add_u32 s45, s45, s46
    s_and_b32 s46, s41, 1
    s_lshl_b32 s46, s46, 8
    s_add_u32 s45, s45, s46
    s_mul_i32 s46, s45, 1152
    s_mul_i32 s47, s40, 2304
    s_add_u32 s47, s47, {L_X}            ; x staging
    v_add_u32 v3, s46, v2
    v_add_u32 v4, {1024 + 146304}, v3
    v_add_u32 v7, 1024, v3
    v_cmp_gt_u32 vcc, 8, v1
    v_add_u32 v6, {2048 + 146304}, v3
    s_add_u32 s38, s36, {NQ1*1024}
    s_addc_u32 s39, s37, 0
    v_cndmask_b32 v4, v4, v7, vcc
    s_waitcnt lgkmcnt(0)""")
    mark(a, 0)
    srd(a, 52, 26, 0, 2048*1152)
    a(f"""s_mov_b32 m0, s47
    s_cmp_eq_u32 s44, 0
    s_cbranch_scc1 RB_nox
    buffer_load_dwordx4 v3, s[52:55], 0 offen lds
    s_add_u32 m0, m0, 1024
    s_nop 0
    buffer_load_dwordx4 v4, s[52:55], 0 offen lds
    s_add_u32 m0, m0, 1024
    s_mov_b64 exec, 0xffff
    buffer_load_dwordx4 v6, s[52:55], 0 offen lds
    s_mov_b64 exec, -1
    RB_nox:
    s_mov_b32 s35, {WS_N}
    s_load_dword s34, s[32:33], s35
    s_mov_b32 m0, s48""")
    for j in range(4):
        a("global_load_lds_dwordx4 v5, s[38:39]\ns_add_u32 m0, m0, 16384\ns_add_u32 s38, s38, 16384\ns_addc_u32 s39, s39, 0")
    a(f"""s_and_b32 s49, s40, 3
    s_lshl_b32 s49, s49, 10
    s_add_u32 m0, s49, 65536
    v_add_u32 v6, s49, v2
    global_load_lds_dwordx4 v6, s[38:39]""")
    srd(a, 56, 32, WS_X1, COLB)
    srd(a, 60, 32, WS_Y1, COLB)
    a(f"""v_and_b32 v7, 511, v0
    v_lshrrev_b32 v8, 2, v7             ; kk (j=0)
    v_and_b32 v9, 3, v0
    v_lshlrev_b32 v9, 4, v9
    s_lshl_b32 s49, s43, 6
    v_lshl_add_u32 v120, v8, 13, v9
    v_add_u32 v120, s49, v120           ; global piece offset (j=0)
    v_bfe_u32 v10, v7, 4, 2
    v_lshlrev_b32 v10, 4, v10
    v_xor_b32 v9, v9, v10
    s_mul_i32 s50, s42, {RU}
    s_add_u32 s50, s50, {L_R}            ; unit regroup base
    v_lshl_add_u32 v121, v8, 6, v9
    v_add_u32 v121, s50, v121           ; lds chunk addr (j=0); +8192 per j
    s_mov_b32 s64, {1<<20}
    s_mov_b32 s65, {2<<20}
    s_lshl_b32 s51, s41, 3
    v_add_u32 v122, {L_B1}, v2
    v_cmp_gt_u32 s[74:75], 132, v7       ; lanes valid for j=2
    s_cmp_eq_u32 s44, 0
    s_cbranch_scc0 B1_go
    s_waitcnt vmcnt(5)
    s_barrier
    s_waitcnt lgkmcnt(0)
    s_add_u32 s34, s34, 0x9e3779b9""".replace("s[74:75], 132, v7", "vcc, 132, v7\n    s_mov_b64 s[74:75], vcc"))
    make_tags(a, E, 7)
    a("s_waitcnt vmcnt(0)\ns_barrier\ns_branch B1_done\nB1_go:\ns_waitcnt vmcnt(8)\ns_barrier")
    K = 8
    C1R, C1I, TAR, TAI, TBR, TBI, SA, SL, SH, RA, AD = K, K+4, K+8, K+12, K+16, K+20, K+24, K+36, K+48, K+60, K+64
    FR, D = 80, 92
    for q in (15, 0, 1, 2, 3, 4, 5, 16, 17, 6, 7, 8, 9, 10, 11, 12, 13, 14): a(f"ds_read_b128 {vr(K+4*q,4)}, v122 offset:{q*1024}")
    a("s_waitcnt lgkmcnt(9)")
    for i in range(4): a(f"v_add_u32 v{RA+i}, s47, v{RA+i}")
    a(f"v_mov_b32 v7, s50")
    for x in range(6): a(f"v_xad_u32 v{AD+x}, v{AD+x}, s51, v7")
    a("s_waitcnt vmcnt(5)"); mark(a, 1)
    for t, (r0, off) in enumerate(((RA, 0), (RA+2, 0), (RA, 1152))):
        a(f"ds_read_b64_tr_b16 {vr(FR+4*t,2)}, v{r0} offset:{off}\nds_read_b64_tr_b16 {vr(FR+4*t+2,2)}, v{r0+1} offset:{off}")
    for t in range(3):
        a(f"s_waitcnt lgkmcnt({4-2*t})")
        a(f"{MF16} {vr(D+8*t,4)}, {vr(FR+4*t,4)}, {vr(C1R,4)}, 0\n{MF16} {vr(D+8*t+4,4)}, {vr(FR+4*t,4)}, {vr(C1I,4)}, 0")
    a("s_add_u32 s34, s34, 0x9e3779b9")
    make_tags(a, E, 7)
    T = 112 + 4
    T = C1R
    d2s = ((D, D+4, D+8), (D+12, D+16, D+20))
    for t in range(3):
        twiddle(a, D+8*t, D+8*t+4, TBR if t == 1 else TAR, TBI if t == 1 else TAI, T, FR+4*t)
        if t == 1:
            for tau in range(3): a(f"{MF16} {vr(d2s[0][tau],4)}, {vr(SA+4*tau,4)}, {vr(FR,4)}, 0")
            for tau in range(3): a(f"{MF16} {vr(d2s[0][tau],4)}, {vr(SL+4*tau,4)}, {vr(FR+4,4)}, {vr(d2s[0][tau],4)}")
    for tau in range(3): a(f"{MF16} {vr(d2s[1][tau],4)}, {vr(SH+4*tau,4)}, {vr(FR+4,4)}, 0")
    for tau in range(3): a(f"{MF16} {vr(d2s[1][tau],4)}, {vr(SA+4*tau,4)}, {vr(FR+8,4)}, {vr(d2s[1][tau],4)}")
    O = TAR
    for i in range(2):
        for tau in range(3):
            for o in range(2): cvt(a, O + 2*(2*tau + o) + i, f"v{d2s[i][tau]+2*o}", f"v{d2s[i][tau]+2*o+1}")
    a("s_mov_b32 exec_lo, 0x1fff1fff\ns_mov_b32 exec_hi, 0x1fff1fff")
    for x in range(6): a(f"ds_write_b64 v{AD+x}, {vr(O+2*x,2)}")
    a("s_mov_b64 exec, -1\ns_waitcnt lgkmcnt(0)")
    mark(a, 2)
    a("s_barrier")
    for j in range(3): a(f"ds_read_b128 {vr(8+4*j,4)}, v121 offset:{8192*j}")
    for j in range(3):
        a(f"s_waitcnt lgkmcnt({2-j})"); tag_in(a, 8+4*j, E)
        a(f"buffer_store_dwordx4 {vr(8+4*j,4)}, v120, s[56:59], {'0' if j == 0 else 's%d' % (63+j)} offen sc1")
    a("s_waitcnt vmcnt(3)")
    a("B1_done:")
    X, W, D, T = 24, 32, 40, 56
    F16C, F16S, F8C, F8S = 8, 12, 16, 20
    KA, KH = 64, 96
    T1R = lambda e: KA + 16*e
    T1I = lambda e: KA + 16*e + 4
    G2C = lambda e: KA + 16*e + 8
    G2S = lambda e: KA + 16*e + 12
    a(f"""s_barrier
    s_lshr_b32 s66, s40, 2              ; team
    s_mul_i32 s67, s66, {NB}
    s_add_u32 s67, s67, s2              ; column
    s_and_b32 s68, s40, 3               ; w
    s_lshl_b32 s69, s67, 13
    s_lshl_b32 s70, s68, 11
    s_add_u32 s69, s69, s70
    v_add_u32 v3, s69, v2
    s_add_u32 s36, s36, {(NQ1+NQF)*1024}
    s_addc_u32 s37, s37, 0
    s_add_u32 s38, s32, {WS_WT}
    s_addc_u32 s39, s33, 0
    s_add_u32 s48, s48, {L_B3}
    s_mov_b32 s73, 0
    s_cmp_lt_u32 s67, 289
    s_cbranch_scc0 FT_idle
    global_load_dwordx4 {vr(X,4)}, v3, s[32:33] sc1
    global_load_dwordx4 {vr(X+4,4)}, v3, s[32:33] offset:1024 sc1
    global_load_dwordx4 {vr(W,4)}, v3, s[38:39] sc1
    global_load_dwordx4 {vr(W+4,4)}, v3, s[38:39] offset:1024 sc1
    s_lshl_b32 s71, s68, 13
    v_add_u32 v7, s71, v2""")
    for q in range(4): a(f"ds_read_b128 {vr(F16C+4*q,4)}, v2 offset:{q*1024}")
    for q in range(8): a(f"ds_read_b128 {vr(KA+4*q,4)}, v7 offset:{4096 + q*1024}")
    for e in range(2):
        for q in range(2): a(f"ds_read_b128 {vr(KH+8*e+4*q,4)}, v7 offset:{36864 + (4*e+q)*1024}")
    a(f"""v_and_b32 v6, 15, v1
    v_lshrrev_b32 v{T}, 4, v1
    v_and_b32 v4, 1, v{T}
    v_lshlrev_b32 v4, 12, v4
    v_lshrrev_b32 v{T}, 1, v{T}
    v_lshl_add_u32 v4, v{T}, 9, v4
    v_lshl_add_u32 v4, v6, 4, v4
    s_lshl_b32 s70, s66, 14
    s_add_u32 s70, s70, {L_EX}
    s_lshr_b32 s71, s68, 1
    s_lshl_b32 s71, s71, 8
    s_add_u32 s71, s71, s70
    s_and_b32 s72, s68, 1
    s_lshl_b32 s72, s72, 3
    s_add_u32 s71, s71, s72
    v_add_u32 v4, s71, v4
    s_lshl_b32 s71, s68, 11
    s_add_u32 s70, s70, s71
    v_add_u32 v6, s70, v2
    s_waitcnt vmcnt(2)
    s_branch FT_pc""")
    def poll(lbl, loads, quads, acc, extra=None):
        a(f"{lbl}x:"); a(loads); a(f"s_waitcnt vmcnt(0)\n{lbl}c:\ns_add_u32 s73, s73, 1")
        tag_chk(a, acc, quads, E)
        if extra: extra()
        a(f"v_and_b32 v{acc}, 0x10001, v{acc}\nv_cmp_ne_u32 vcc, 0, v{acc}\ns_cmp_gt_u32 s73, {TMO}\ns_cbranch_scc1 {lbl}go\ns_cbranch_vccnz {lbl}x\n{lbl}go:")
    poll("FT_p", f"global_load_dwordx4 {vr(X,4)}, v3, s[32:33] sc1\nglobal_load_dwordx4 {vr(X+4,4)}, v3, s[32:33] offset:1024 sc1", (X, X+4), T)
    mark(a, 3)
    a("s_waitcnt lgkmcnt(0)")
    DR = lambda e: D + 8*e
    DI = lambda e: D + 8*e + 4
    def stage(e, cc, cs, asA, inv):
        re, im = (DI(e), DR(e)) if inv else (DR(e), DI(e))
        for dst, k in ((re, cc), (im, cs)):
            if asA: a(f"{MF16} {vr(dst,4)}, {vr(X+4*e,4)}, {vr(k,4)}, 0")
            else: a(f"{MF16} {vr(dst,4)}, {vr(k,4)}, {vr(X+4*e,4)}, 0")
    def exch(buf, swap, pre=""):
        for e in range(2):
            for i in range(4):
                lo, hi = f"v{DR(e)+i}", f"v{DI(e)+i}"
                if swap: lo, hi = hi, lo
                cvt(a, X + 2*i + e, lo, hi)
        for i in range(4): a(f"ds_write_b64 v4, {vr(X+2*i,2)} offset:{buf+1024*i}")
        a(f"s_waitcnt {pre}lgkmcnt(0)\ns_barrier")
        for e in range(2): a(f"ds_read_b128 {vr(X+4*e,4)}, v6 offset:{buf+1024*e}")
    def b3dma(lbl):
        a(f"""s_mov_b32 m0, s48
        s_add_u32 s38, s36, 16384
        s_addc_u32 s39, s37, 0
        global_load_lds_dwordx4 v5, s[36:37]
        s_cmp_lt_u32 s40, {NQ3-16}
        s_cbranch_scc0 {lbl}
        s_add_u32 m0, m0, 16384
        s_nop 0
        global_load_lds_dwordx4 v5, s[38:39]
        {lbl}:""")
    stage(0, F16C, F16S, True, False); stage(1, F16C, F16S, True, False)
    for e in range(2):
        twiddle(a, DR(e), DI(e), T1R(e), T1I(e), T, X+4*e)
        stage(e, G2C(e), G2S(e), False, False)
    for e in range(2):
        for q in range(2): a(f"ds_read_b128 {vr(G2C(e)+4*q,4)}, v7 offset:{36864 + (4*e+2+q)*1024}")
    a("s_waitcnt vmcnt(0)\ns_branch FT_wc")
    poll("FT_w", f"global_load_dwordx4 {vr(W,4)}, v3, s[38:39] sc1\nglobal_load_dwordx4 {vr(W+4,4)}, v3, s[38:39] offset:1024 sc1", (W, W+4), T)
    exch(0, False)
    b3dma("FT_d1")
    for e in range(2):
        for i in range(4): a(f"v_lshlrev_b32 v{T1R(e)+i}, 16, v{W+4*e+i}\nv_and_b32 v{T1I(e)+i}, 0xffff0000, v{W+4*e+i}")
    for e in range(2):
        a(f"s_waitcnt lgkmcnt({1-e})"); stage(e, F8C, F8S, False, False)
    for e in range(2):
        twiddle(a, DR(e), DI(e), T1R(e), T1I(e), T, X+4*e, swap=True)
        stage(e, F8C, F8S, False, True)
    exch(8192, True, "vmcnt(0) ")
    a(f"s_add_u32 s38, s32, {WS_Y1}\ns_addc_u32 s39, s33, 0")
    for e in range(2):
        a(f"s_waitcnt lgkmcnt({1-e})"); stage(e, KH+8*e, KH+8*e+4, True, True)
    for e in range(2):
        twiddle(a, DR(e), DI(e), G2C(e), G2S(e), T, X+4*e, swap=True)
        stage(e, F16C, F16S, False, True)
    for e in range(2):
        for i in range(4): cvt(a, W+4*e+i, f"v{DR(e)+i}", f"v{DI(e)+i}")
        tag_in(a, W+4*e, E)
        a(f"global_store_dwordx4 v3, {vr(W+4*e,4)}, s[38:39] offset:{1024*e} sc1")
    mark(a, 4)
    a("s_branch B3\nFT_idle:\ns_barrier")
    b3dma("FT_d2")
    a("s_waitcnt vmcnt(0)\ns_barrier")
    a("B3:\ns_cmp_eq_u32 s44, 0\ns_cbranch_scc0 B3_go\ns_barrier")
    stamp_end(a)
    a("s_endpgm\nB3_go:")
    CR, CI, TAR, TAI, TBR, TBI, EA, EL, EH, AD = 8, 32, 56, 60, 64, 68, 72, 76, 80, 84
    FA, FB = 96, 104
    SG = 108
    lds = "\n".join(f"buffer_load_dwordx4 {vr(SG+4*j,4)}, v120, s[60:63], {'0' if j == 0 else 's%d' % (63+j)} offen sc1" for j in range(3))
    a(lds)
    a(f"v_add_u32 v122, {L_B3}, v2")
    for q in list(range(19, 22)) + list(range(19)): a(f"ds_read_b128 {vr(8+4*q,4)}, v122 offset:{q*1024}")
    srd(a, 52, 4, 0, 2048*2304)
    a(f"s_mul_i32 s47, s45, 2304\ns_add_u32 s47, s47, 1152\ns_add_u32 s46, s47, {RS}\nv_mov_b32 v7, s50")
    for x in (FB+2, FB+3, FB+6, FB+7): pass
    a(f"s_waitcnt lgkmcnt(15)")
    for x in range(6): a(f"v_xad_u32 v{AD+x}, v{AD+x}, s51, v7")
    a("s_waitcnt vmcnt(0)\ns_branch B3_pc")
    def extra():
        tag_chk(a, 6, (SG+8,), E)
        a(f"v_cndmask_b32 v6, 0, v6, s[74:75]\nv_or_b32 v7, v7, v6")
    poll("B3_p", lds, (SG, SG+4), 7, extra)
    mark(a, 5)
    a(f"ds_write_b128 v121, {vr(SG,4)}\nds_write_b128 v121, {vr(SG+4,4)} offset:8192\ns_mov_b64 exec, s[74:75]\nds_write_b128 v121, {vr(SG+8,4)} offset:16384\ns_mov_b64 exec, -1")
    a("s_waitcnt lgkmcnt(0)\ns_barrier")
    R = 112
    for s_ in range(6): a(f"ds_read_b64 {vr(R+2*s_,2)}, v{AD+s_}")
    a(f"""s_or_b32 s66, s2, s40
    s_cmp_eq_u32 s66, 0
    s_cbranch_scc0 B3_nn
    v_mov_b32 v6, {WS_N}
    v_mov_b32 v7, s34
    s_mov_b64 exec, 1
    global_store_dword v6, v7, s[32:33]
    s_mov_b64 exec, -1
    B3_nn:""")
    for x in (FB+2, FB+3, FB+6, FB+7): a(f"v_mov_b32 v{x}, 0")
    a("s_waitcnt lgkmcnt(2)")
    for i in range(2):
        for s_ in range(4): a(f"v_mov_b32 v{FA+4*i+s_}, v{R+2*s_+i}")
    a("s_waitcnt lgkmcnt(0)")
    for i in range(2):
        for s_ in range(2): a(f"v_mov_b32 v{FB+4*i+s_}, v{R+8+2*s_+i}")
    DT = (112, 0, 120)
    for i in range(2):
        tA = DT[2*i]; tB = DT[1]; blk = 1 + i
        for fr, ko, fst in ((FA, 0, True), (FB, 4, False)):
            for c, o in ((CR, 0), (CI, 4)):
                a(f"{MF16} {vr(tA+o,4)}, {vr(fr+4*i,4)}, {vr(c+ko,4)}, {'0' if fst else vr(tA+o,4)}")
                a(f"{MF16} {vr(tB+o,4)}, {vr(fr+4*i,4)}, {vr(c+8*blk+ko,4)}, {'0' if (fst and i == 0) else vr(tB+o,4)}")
    P = 8; OA = 20; OB = 32; T = FA
    twiddle(a, DT[0], DT[0]+4, TAR, TAI, T, P)
    a(f"{MF16} {vr(OA,4)}, {vr(P,4)}, {vr(EA,4)}, 0\n{MF16} {vr(OB,4)}, {vr(P,4)}, {vr(EL,4)}, 0")
    twiddle(a, DT[2], DT[2]+4, TAR, TAI, T, P+8)
    a(f"{MF16} {vr(OA+8,4)}, {vr(P+8,4)}, {vr(EA,4)}, 0\n{MF16} {vr(OB,4)}, {vr(P+8,4)}, {vr(EH,4)}, {vr(OB,4)}")
    twiddle(a, DT[1], DT[1]+4, TBR, TBI, T, P+4)
    a(f"{MF16} {vr(OA+4,4)}, {vr(P+4,4)}, {vr(EA,4)}, 0\n{MF16} {vr(OB+4,4)}, {vr(P+4,4)}, {vr(EL,4)}, 0")
    for n, (o, ad, so) in enumerate(((OA, AD+6, "s47"), (OA+8, AD+6, "s46"), (OB, AD+8, "s47"), (OA+4, AD+7, "s47"), (OB+4, AD+9, "s47"))):
        dd = 40 + 2*n
        cvt(a, dd, f"v{o}", f"v{o+1}"); cvt(a, dd+1, f"v{o+2}", f"v{o+3}")
        a(f"buffer_store_dwordx2 {vr(dd,2)}, v{ad}, s[52:55], {so} offen")
    mark(a, 6)
    stamp_end(a)
    a("s_endpgm")

a = A()
a.l += [f".globl {KNAME}", ".p2align 8", f".type {KNAME},@function", f"{KNAME}:"]
stamp_start(a)
a(f"""s_load_dwordx16 s[8:23], s[0:1], 0
s_load_dwordx8 s[24:31], s[0:1], 64
s_load_dwordx2 s[4:5], s[0:1], 96
s_load_dwordx2 s[32:33], s[0:1], 112
s_cmp_ge_u32 s2, 256
s_cbranch_scc1 EXIT
s_getpc_b64 s[6:7]
PF0:
v_lshrrev_b32 v2, 6, v0
v_lshlrev_b32 v3, 6, v0
v_readfirstlane_b32 s40, v2
v_min_u32 v3, CODE_END-PF0-4, v3
v_and_b32 v1, 63, v0
s_mov_b32 s73, 0
s_cmp_ge_u32 s40, 4
s_cbranch_scc1 NOPF
global_load_dword v123, v3, s[6:7]
NOPF:
s_cmp_lt_u32 s2, {NB}
s_cbranch_scc1 RB""")
role_a(a)
role_b(a)
a("EXIT:\ns_endpgm\nCODE_END:")
body, tot = pad(a.l)
def dump(t):
    w = t.reshape(-1)
    return "\n".join(".long " + ",".join("0x%x" % x for x in w[i:i+16]) for i in range(0, len(w), 16))
tabs = ".p2align 8\nTAB_B1:\n" + dump(TB1) + "\n" + dump(TFT) + "\n" + dump(TB3) + "\n"
hdr = f"""; S4 long-conv (Toeplitz MFMA) + GFNet 2D spectral filter (MFMA FFT), one persistent launch. Generated by my own generator (gen2.py).
; @launch grid=(256,1,1) block=(1024,1,1) lds={LDS}
.amdgcn_target "amdgcn-amd-amdhsa--gfx950"
.text
"""
kd = f""".section .rodata,"a"
.p2align 6
.amdhsa_kernel {KNAME}
  .amdhsa_next_free_vgpr 128
  .amdhsa_next_free_sgpr 102
  .amdhsa_accum_offset 128
  .amdhsa_group_segment_fixed_size 0
  .amdhsa_kernarg_size 120
  .amdhsa_user_sgpr_count 2
  .amdhsa_user_sgpr_kernarg_segment_ptr 1
  .amdhsa_system_sgpr_workgroup_id_x 1
.end_amdhsa_kernel
"""
open(sys.argv[1], "w").write(hdr + "\n".join(body) + "\n" + tabs + kd)
print("nop states inserted", tot)
```

```python
import sys, math, re
import numpy as np
from asmlib import *
OPT = dict(a.split("=") if "=" in a else (a, "1") for a in sys.argv[2:])
STAMP = int(OPT.get("stamp", 0))
KNAME = "concat_heads__ssm_conv_s4__spectral_gfnet__prompt_kernel"
WS_N = 0; WS_X1 = 0x1000; WS_Y1 = 0x270000; WS_UT = 0x4E0000; WS_YT = 0x720000
WS_STAMP = 0x1000000
WSB = int(OPT.get('wsb', '0'), 0)
COLB = 304*8192
LOG2E = 1.4426950408889634
MF16 = "v_mfma_f32_16x16x32_bf16"; MF32 = "v_mfma_f32_32x32x16_bf16"
NB = 160; NA = 288
BFIRST = int(OPT.get('bfirst', 1))
TMO = 3000
DLX = int(OPT.get('dlx', 12)); DLY = int(OPT.get('dly', 24)); DLU = int(OPT.get('dlu', 18)); DLT = int(OPT.get('dlt', 24)); DLL = int(OPT.get('dll', 28))
def backoff(a, n):
    if n: a(f's_sleep {n}')
TLB = int(OPT.get('tlb', 0))
PRIO = int(OPT.get('prio', 3)); PRIOA = int(OPT.get('prioa', 2)); ACKW = int(OPT.get('ackw', 1)); PRIOU = int(OPT.get('priou', 3))
def bf(x):
    u = np.asarray(x, np.float32).view(np.uint32) if np.ndim(x) else np.array([x], np.float32).view(np.uint32)
    return ((u + 0x7FFF + ((u >> 16) & 1)) >> 16).astype(np.uint32)
def pk(lo, hi): return bf(np.asarray(lo, np.float64).astype(np.float32)) | (bf(np.asarray(hi, np.float64).astype(np.float32)) << 16)
def f32(x): return np.asarray(x, np.float64).astype(np.float32).view(np.uint32)
L = np.arange(64); RHO = L & 15; G = L >> 4
C = lambda rev: np.cos(2*np.pi*rev); S = lambda rev: np.sin(2*np.pi*rev)
def quad(f): return np.stack([np.asarray(f(i), np.uint32) for i in range(4)], axis=1)
def swz(kk): return kk*64 + ((kk >> 2) & 3)*16
def tab_b1():
    q = []
    d1 = lambda j: 4*G + j if j < 4 else 16 + 4*(G & 1) + (j - 4)
    m = lambda j: np.ones(64) if j < 4 else (G < 2)*1.0
    q.append(quad(lambda i: pk(C(d1(2*i)*RHO/24)*m(2*i), C(d1(2*i+1)*RHO/24)*m(2*i+1))))
    q.append(quad(lambda i: pk(-S(d1(2*i)*RHO/24)*m(2*i), -S(d1(2*i+1)*RHO/24)*m(2*i+1))))
    dA = lambda i: 4*G + i
    dB = lambda i: 16 + 4*(G & 1) + i
    for d in (dA, dB):
        q.append(quad(lambda i: f32(C(RHO*d(i)/576)))); q.append(quad(lambda i: f32(-S(RHO*d(i)/576))))
    for d, mk in ((dA, np.ones(64)), (dB, (G < 2)*1.0), (dB, (G >= 2)*1.0)):
        for tau in range(3):
            k2 = 8*tau + (RHO >> 1); ph = (RHO & 1)*np.where(k2 < 12, 0.25, -0.25)
            q.append(quad(lambda i: pk(mk*C(d(i)*k2/24 + ph), mk*S(d(i)*k2/24 + ph))))
    ra0 = (4*G + (RHO >> 2))*48 + (RHO & 3)*8; ra1 = (16 + 4*(G & 1) + (RHO >> 2))*48 + (RHO & 3)*8
    ex = ((RHO & 3) >> 1)*1152 + 32 + (RHO & 1)*8 - (RHO & 3)*8
    q.append(np.stack([ra0, ra1, ra0 + ex, ra1 + ex], axis=1).astype(np.uint32))
    ad = []
    for tau in range(3):
        for o in range(2):
            k2 = 8*tau + 2*G + o; k = np.minimum(RHO, 12) + 24*k2
            ad.append(swz(np.where(k2 < 12, k, 576 - k)))
    ad += [0*L, 0*L]
    q.append(np.stack(ad[:4], axis=1).astype(np.uint32)); q.append(np.stack(ad[4:], axis=1).astype(np.uint32))
    return np.stack(q)
RS = 128*2304
def tab_b3():
    q = []
    sg = np.where(G < 2, 1.0, -1.0)
    cols = ((RHO, np.ones(64)), (16 + (RHO & 7), (RHO < 8)*1.0), (16 + (RHO & 7), (RHO >= 8)*1.0))
    for im in range(2):
        for d2, mk in cols:
            for st in range(2):
                def f(i):
                    s_ = 4*st + i
                    if s_ >= 6: return np.zeros(64, np.uint32)
                    rev = d2*(6*G + s_)/24
                    return pk(mk*S(rev), mk*sg*C(rev)) if im else pk(mk*C(rev), -mk*sg*S(rev))
                q.append(quad(f))
    sc = 1.0/(2048*576)
    for d2, _ in cols[:2]:
        q.append(quad(lambda i: f32(sc*C(d2*(4*G + i)/576)))); q.append(quad(lambda i: f32(sc*S(d2*(4*G + i)/576))))
    for d1, mk in cols:
        def f(i):
            k1 = 4*G + i; wg = np.where((k1 == 0) | (k1 == 12), 1.0, np.where(k1 > 12, 0.0, 2.0))*mk
            return pk(wg*C(d1*k1/24), -wg*S(d1*k1/24))
        q.append(quad(f))
    ad = []
    for s_ in range(6):
        k = np.minimum(RHO, 12) + 24*(6*G + s_)
        ad.append(swz(np.where(G < 2, k, 576 - k)))
    xB = 32 + 8*(G & 1) + (G >> 1)*1152
    hi = 768 + 48*(RHO & 7)
    ad += [48*RHO + 8*G, 48*RHO + xB]
    q.append(np.stack(ad[:4], axis=1).astype(np.uint32)); q.append(np.stack(ad[4:], axis=1).astype(np.uint32))
    q.append(np.stack([hi + (RHO >> 3)*1152 + 8*G, hi + xB, 0*L, 0*L], axis=1).astype(np.uint32))
    return np.stack(q)
TB1, TB3 = tab_b1(), tab_b3()
NQ1, NQ3 = len(TB1), len(TB3)
assert (NQ1, NQ3) == (18, 22)
L_B1 = 0; L_R = 0; L_X = 20480; L_FS = 38912; L_EX = 0; L_B3 = 55296; L_S3 = 35840; L_EX2 = 19456; L_F8 = 77824; L_W = 55296
CP = 5216; CS = 4*CP; L_CH = 64; L_KG = L_CH + 2*CS; PP = 36864; L_YS = 73728
LDS = 81920

def cmul(a, o, x, y, conj=False):
    if int(OPT.get("nopkk", 0)):
        a(f"v_mul_f32 v{o}, v{x}, v{y}\nv_mul_f32 v{o+1}, v{x+1}, v{y}")
        if conj: a(f"v_fmac_f32 v{o}, v{x+1}, v{y+1}\nv_fma_f32 v{o+1}, -v{x}, v{y+1}, v{o+1}")
        else: a(f"v_fma_f32 v{o}, -v{x+1}, v{y+1}, v{o}\nv_fmac_f32 v{o+1}, v{x}, v{y+1}")
        return
    a(f"v_pk_mul_f32 {vr(o,2)}, {vr(x,2)}, {vr(y,2)} op_sel:[0,0] op_sel_hi:[1,0]")
    a(f"v_pk_fma_f32 {vr(o,2)}, {vr(x,2)}, {vr(y,2)}, {vr(o,2)} op_sel:[1,1,0] op_sel_hi:[0,1,1] {'neg_hi' if conj else 'neg_lo'}:[1,0,0]")
def cvt(a, d, lo, hi): a(f"v_cvt_pk_bf16_f32 v{d}, {lo}, {hi}")
def srd(a, s, base, off, nrec):
    if off == 0: a(f"s_mov_b32 s{s}, s{base}\ns_mov_b32 s{s+1}, s{base+1}")
    else: a(f"s_add_u32 s{s}, s{base}, {off}\ns_addc_u32 s{s+1}, s{base+1}, 0")
    a(f"s_mov_b32 s{s+2}, {nrec}\ns_mov_b32 s{s+3}, 0x20000")
MSET = OPT.get("mset", "")
PROBE = OPT.get("probe", ""); ROLE = ["A"]
def mark(a, i, grp=""):
    if PROBE and grp == "" and PROBE == ROLE[0] + str(i): a("s_memrealtime s[96:97]\ns_mov_b32 s95, 1")
    if MSET == "st": return
    if STAMP and (grp == MSET or (grp == "" and not (MSET and i in (0, 1, 2, 7)))): a(f"s_memtime s[{78+2*i}:{79+2*i}]")
SPIN = int(OPT.get("spin", 0)); SPC = [0]
def stamp_start(a):
    if PROBE: a("s_mov_b32 s95, 0")
    if SPIN: a("s_memrealtime s[96:97]")
    if STAMP:
        a("s_memrealtime s[96:97]\ns_memtime s[76:77]")
        for i in range(8): a(f"s_mov_b64 s[{78+2*i}:{79+2*i}], 0")
def stamp_end(a):
    if PROBE:
        SPC[0] += 1
        a(f"""s_cmp_eq_u32 s95, 0
        s_cbranch_scc1 SQ{SPC[0]}
        s_waitcnt vmcnt(0) lgkmcnt(0)
        SP{SPC[0]}:
        s_sleep 4
        s_memrealtime s[98:99]
        s_waitcnt lgkmcnt(0)
        s_sub_u32 s94, s98, s96
        s_cmp_lt_u32 s94, 2000
        s_cbranch_scc1 SP{SPC[0]}
        SQ{SPC[0]}:""")
    if SPIN:
        SPC[0] += 1
        a(f"""s_waitcnt vmcnt(0) lgkmcnt(0)
        SP{SPC[0]}:
        s_sleep 4
        s_memrealtime s[98:99]
        s_waitcnt lgkmcnt(0)
        s_sub_u32 s94, s98, s96
        s_cmp_lt_u32 s94, {SPIN}
        s_cbranch_scc1 SP{SPC[0]}""")
    if not STAMP: return
    a(f"""s_waitcnt vmcnt(0) lgkmcnt(0)
    s_memrealtime s[98:99]
    s_memtime s[94:95]
    s_mov_b64 exec, -1
    s_lshl_b32 s100, s2, 3
    s_add_u32 s100, s100, s40
    s_lshl_b32 s100, s100, 6
    s_add_u32 s100, s100, {WS_STAMP}
    v_mov_b32 v1, s100
    s_waitcnt lgkmcnt(0)
    v_mov_b32 v2, s96
    v_mov_b32 v3, s98""")
    for i in range(9): a(f"s_sub_u32 s{78+2*i}, s{78+2*i}, s76\nv_mov_b32 v{4+i}, s{78+2*i}")
    a("""v_mov_b32 v13, s73
    s_getreg_b32 s78, hwreg(HW_REG_HW_ID)
    s_getreg_b32 s79, hwreg(HW_REG_XCC_ID)
    v_mov_b32 v14, s78
    v_mov_b32 v15, s79
    s_mov_b64 exec, 1
    global_store_dwordx2 v1, v[14:15], s[32:33] offset:48
    global_store_dwordx4 v1, v[2:5], s[32:33]
    global_store_dwordx4 v1, v[6:9], s[32:33] offset:16
    global_store_dwordx4 v1, v[10:13], s[32:33] offset:32""")
def twiddle(a, dr, di, tr, ti, t, P, swap=False):
    if isinstance(t, int): t = [t, t+1, t+2, t+3]
    for i in range(4): a(f"v_mul_f32 v{t[i]}, v{dr+i}, v{ti+i}\nv_mul_f32 v{dr+i}, v{dr+i}, v{tr+i}")
    for i in range(4): a(f"v_fma_f32 v{dr+i}, -v{di+i}, v{ti+i}, v{dr+i}\nv_fma_f32 v{di+i}, v{di+i}, v{tr+i}, v{t[i]}")
    for i in range(4): cvt(a, P + i, f"v{(di if swap else dr)+i}", f"v{(dr if swap else di)+i}")
def make_tags(a, E, t, q="quad"):
    if q == "quad": a(f"v_and_b32 v{t}, 3, v0\nv_lshlrev_b32 v{t}, 3, v{t}")
    elif q == "grp": a(f"v_lshrrev_b32 v{t}, 1, v1\nv_and_b32 v{t}, 24, v{t}")
    else: a(f"v_lshlrev_b32 v{t}, 3, v{q}")
    a(f"v_bfe_u32 v{t}, s34, v{t}, 8\nv_lshl_or_b32 v{t}, v{t}, 15, v{t}")
    for i in range(4):
        if i: a(f"v_lshrrev_b32 v{E+i}, {2*i}, v{t}\nv_and_b32 v{E+i}, 0x10001, v{E+i}")
        else: a(f"v_and_b32 v{E}, 0x10001, v{t}")
    a("s_mov_b32 s35, 0xfffefffe")
def tag_in(a, d, E):
    for i in range(4): a(f"v_and_or_b32 v{d+i}, v{d+i}, s35, v{E+i}")
def tag_chk(a, acc, quads, E):
    first = True
    for d in quads:
        for i in range(4):
            if first: a(f"v_xor_b32 v{acc}, v{d+i}, v{E+i}"); first = False
            else: a(f"v_bitop3_b32 v{acc}, v{acc}, v{d+i}, v{E+i} bitop3:0xf6")

E = 124
NONCE = "s_add_u32 s34, s34, 0x9e3779b9"
SLP = int(OPT.get("slp", 2))
PD = int(OPT.get("pd", 1)); PSL = int(OPT.get("psl", 8))
def poll(a, lbl, loads, quads, acc, extra=None, mode="quad"):
    n = len(loads.split("\n"))
    def check():
        tag_chk(a, acc, quads, E)
        a(f"v_and_b32 v{acc}, 0x10001, v{acc}\nv_cmp_ne_u32 vcc, 0, v{acc}\ns_cbranch_vccz {lbl}go")
        if mode == "quad":
            a(f"v_or_b32_dpp v{acc}, v{acc}, v{acc} quad_perm:[1,0,3,2] row_mask:0xf bank_mask:0xf")
            a(f"s_add_u32 s73, s73, 1")
            a(f"v_or_b32_dpp v{acc}, v{acc}, v{acc} quad_perm:[2,3,0,1] row_mask:0xf bank_mask:0xf")
            a(f"v_cmp_ne_u32 vcc, 0, v{acc}\ns_cmp_gt_u32 s73, {TMO}\ns_mov_b64 exec, vcc")
        else:
            a(f"s_or_b32 s71, vcc_lo, vcc_hi\ns_lshr_b32 s72, s71, 16\ns_or_b32 s71, s71, s72\ns_pack_ll_b32_b16 s71, s71, s71")
            a(f"s_add_u32 s73, s73, 1\ns_cmp_gt_u32 s73, {TMO}\ns_mov_b32 exec_lo, s71\ns_mov_b32 exec_hi, s71")
    a(f"{lbl}x:"); a(loads); a(f"s_waitcnt vmcnt(0)\n{lbl}c:\ns_mov_b32 s74, 0")
    a(f"{lbl}l:")
    check()
    a(f"s_cbranch_scc1 {lbl}to")
    if PD > 1:
        a(f"s_cmp_lg_u32 s74, 0\ns_cbranch_scc1 {lbl}s\ns_mov_b32 s74, 1")
        for _ in range(PD - 1): a(loads); a(f"s_sleep {PSL}")
        a(f"{lbl}s:")
    if PD == 1: a("s_sleep 1")
    a(loads)
    a(f"s_mov_b64 exec, -1\ns_waitcnt vmcnt({n*(PD-1)})\ns_branch {lbl}l\n{lbl}to:\ns_mov_b64 exec, -1\n{lbl}go:")

def conv_early(a):
    a(f"""s_and_b32 s55, s40, 3
    s_lshl_b32 s55, s55, 7
    s_lshr_b32 s56, s40, 2
    s_mul_i32 s56, s56, {CS}
    s_sub_u32 s55, s56, s55
    v_and_b32 v93, 1, v1
    v_mul_u32_u24 v94, {CP}, v93
    v_lshrrev_b32 v95, 4, v1
    v_lshl_add_u32 v93, v95, 4, v94
    v_lshlrev_b32 v95, 4, v95
    v_sub_u32 v94, v95, v94
    v_bfe_u32 v95, v1, 1, 3
    v_lshl_add_u32 v94, v95, 6, v94
    v_lshlrev_b32 v95, 3, v95
    v_sub_u32 v93, v93, v95
    s_add_u32 s56, s55, {L_CH + 4088 - 3584 - 64}
    v_add_u32 v93, s56, v93             ; A addr (second step; first = +64)
    s_add_u32 s56, s55, {L_CH + 3*CP + 448 - 64}
    v_add_u32 v94, s56, v94             ; B addr""")

def role_a(a):
    a("RA:")
    if OPT.get("onlyb"): a("s_endpgm")
    a(f"s_setprio {PRIOA}")
    a("s_cmp_ge_u32 s40, 4\ns_cbranch_scc1 UT")
    a(f"""v_mov_b32 v10, 0
    v_mov_b32 v11, 0
    v_mov_b32 v12, 0
    v_mov_b32 v13, 0
    v_mov_b32 v14, 0
    v_mov_b32 v15, 0
    s_lshr_b32 s46, s40, 1
    s_and_b32 s42, s40, 1               ; hf
    s_lshl_b32 s43, s41, 9
    s_lshl_b32 s44, s40, 7
    s_add_u32 s43, s43, s44
    v_lshl_add_u32 v3, v1, 1, s43
    s_lshl_b32 s45, s41, 2
    s_mul_i32 s47, s40, 8704
    s_add_u32 s47, s47, {L_KG}
    s_waitcnt lgkmcnt(0)
    global_load_short_d16_hi v10, v3, s[10:11]
    global_load_short_d16_hi v11, v3, s[12:13]
    global_load_short_d16_hi v12, v3, s[14:15]
    global_load_short_d16_hi v13, v3, s[16:17]
    global_load_short_d16_hi v14, v3, s[18:19]
    global_load_short_d16_hi v15, v3, s[20:21]
    ;TLBA
    s_load_dword s48, s[22:23], s45
    s_load_dword s49, s[24:25], s45
    s_load_dword s34, s[32:33], {WS_N}""")
    mark(a, 0)
    a(f"""s_sub_u32 m0, s47, {L_KG}
    v_and_b32 v5, 31, v1               ; r
    v_lshrrev_b32 v6, 5, v1            ; h
    v_mul_u32_u24 v7, 272, v5
    v_lshl_add_u32 v7, v6, 4, v7
    v_add_u32 v7, s47, v7
    s_mul_i32 s50, s46, {CS}
    s_add_u32 s50, s50, {L_CH}
    v_lshlrev_b32 v8, 4, v5
    v_lshlrev_b32 v9, 9, v6
    v_add_u32 v8, v8, v9
    v_add_u32 v9, v8, v9
    s_add_u32 s51, s50, 3056
    v_sub_u32 v8, s51, v8
    s_add_u32 s51, s50, 1520
    v_sub_u32 v9, s51, v9
    v_mov_b32 v20, 0
    v_mov_b32 v21, 0
    v_mov_b32 v22, 0
    v_mov_b32 v23, 0
    s_cmp_eq_u32 s42, 0
    s_cselect_b32 s51, 4096, 0
    s_cselect_b32 s52, 0, {2*CP}
    s_add_u32 s51, s51, s52
    s_add_u32 s51, s51, s50
    v_mul_u32_u24 v16, {CP}, v6
    v_min_u32 v17, 27, v5
    v_lshl_add_u32 v16, v17, 4, v16
    v_add_u32 v16, s51, v16
    v_mov_b32 v17, s50
    ds_write_b128 v16, v[20:23]
    ds_write_b32 v17, v20 offset:{3*CP + 448}""")
    conv_early(a)
    a(f"""s_waitcnt lgkmcnt(0)
    s_barrier
    {NONCE}
    s_lshl_b32 s52, s48, 16
    s_and_b32 s48, s48, 0xffff0000
    s_lshl_b32 s53, s49, 16
    s_and_b32 s49, s49, 0xffff0000
    s_cmp_eq_u32 s46, 0
    s_cselect_b32 s48, s52, s48        ; log_dt
    s_cselect_b32 s49, s53, s49        ; Dskip
    v_mov_b32 v16, {f32hex(LOG2E)}
    v_mul_f32 v17, s48, v16
    v_exp_f32 v17, v17
    v_cmp_eq_u32 vcc, 0, v1
    v_mov_b32 v18, s49
    v_cvt_pk_bf16_f32 v17, v17, v17
    v_cndmask_b32 v18, 0, v18, vcc
    v_and_b32 v17, 0xffff0000, v17     ; dt
    v_mul_f32 v16, v17, v16
    v_mul_f32 v19, 0.15915494, v17
    s_waitcnt vmcnt(4)
    v_mul_f32 v20, v16, v10
    v_mul_f32 v21, v19, v11""")
    Z1, Z8, Z256 = 22, 24, 26
    a(f"v_mul_f32 v28, {f32hex(8.0)}, v20\nv_mul_f32 v29, {f32hex(8.0)}, v21\nv_mul_f32 v30, {f32hex(256.0)}, v20\nv_mul_f32 v31, {f32hex(256.0)}, v21")
    a("v_fract_f32 v29, v29\nv_fract_f32 v21, v21\nv_fract_f32 v31, v31")
    a("v_exp_f32 v28, v28\nv_cos_f32 v24, v29\nv_sin_f32 v25, v29")
    a("v_exp_f32 v20, v20\nv_cos_f32 v22, v21\nv_sin_f32 v23, v21")
    a("v_exp_f32 v30, v30\nv_cos_f32 v26, v31\nv_sin_f32 v27, v31")
    a("s_waitcnt vmcnt(0)"); mark(a, 1)
    a("""v_mul_f32 v32, v14, v12
    v_mul_f32 v33, v14, v13
    v_fma_f32 v32, -v15, v13, v32
    v_fma_f32 v33, v15, v12, v33
    v_mul_f32 v24, v24, v28
    v_mul_f32 v25, v25, v28
    v_mul_f32 v32, v32, v17
    v_mul_f32 v33, -v33, v17
    v_mul_f32 v22, v22, v20
    v_mul_f32 v23, v23, v20
    v_mul_f32 v26, v26, v30
    v_mul_f32 v27, v27, v30""")
    Zr = {1: Z1, 8: Z8, 256: Z256}; nxt = [36]
    colops = [("keep", e, x, y) for e, x, y in [(2,1,1),(512,256,256),(3,2,1),(4,2,2),(768,512,256),(1024,512,512),(5,4,1),(6,4,2),(7,4,3),(1280,1024,256),(1536,1024,512),(1792,1024,768)]]
    colops += [("tmp", e, x, y) for e, x, y in [(258,256,2),(260,256,4),(262,256,6),(264,256,8),(516,512,4),(520,512,8),(772,768,4),(776,768,8),(1032,1024,8),(1288,1280,8),(1544,1536,8),(1800,1792,8)]]
    for k, e, x, y in colops:
        if k == "keep": Zr[e] = nxt[0]; nxt[0] += 2
    TMP = nxt[0]; nxt[0] += 4
    PK = {}
    for e in [0,1,2,3,4,5,6,7,512,516,520,1024,1032,1280,1288,256,258,260,262,264,768,772,776,1536,1544,1792,1800]:
        PK[e] = nxt[0]; nxt[0] += 1
    CV = nxt[0]; nxt[0] += 2
    colq = [lambda: a(f"v_mov_b32 v{PK[0]}, 0x3f80")]
    for e in (1, 256): colq.append(lambda e=e: cvt(a, PK[e], f"v{Zr[e]}", f"v{Zr[e]+1}"))
    ti = 0
    for k, e, x, y in colops:
        o = Zr[e] if k == "keep" else TMP + 2*(ti & 1)
        if k != "keep": ti += 1
        colq.append(lambda o=o, x=x, y=y: cmul(a, o, Zr[x], Zr[y]))
        colq.append(lambda o=o, e=e: cvt(a, PK[e], f"v{o}", f"v{o+1}"))
    Q = [32, 34]
    if OPT.get("skipkg"): a("s_sub_u32 s60, s41, 96\ns_cmp_lt_u32 s60, 128\ns_cbranch_scc1 KG_skip")
    for r in range(32):
        q = Q[r & 1]
        cvt(a, CV + (r & 1), f"v{q}", f"v{q+1}")
        if r < 31: cmul(a, Q[(r+1) & 1], q, Z8, conj=True)
        a(f"ds_write_addtid_b32 v{CV + (r&1)} offset:{L_KG + r*272}")
        for _ in range(2):
            if colq: colq.pop(0)()
    while colq: colq.pop(0)()
    mark(a, 2)
    FB = 20; ACC = 52; FA = (nxt[0] + 3) & ~3
    assert FA + 32 <= 128
    for ks in range(8): a(f"ds_read_b128 {vr(FB+4*ks,4)}, v7 offset:{32*ks}")
    slots = [[0,1,2,3,4,5,6,7,512,516,520,1024,1032,1280,1288],[256,256,258,260,260,260,262,264,768,772,776,1536,1544,1792,1800]]
    for h in range(2):
        for i, e in enumerate(slots[h]):
            a(f"ds_write_addtid_b32 v{PK[e]} offset:{L_KG + (8*(i >> 2) + 4*h + (i & 3))*272}")
    for ks in range(8): a(f"ds_read_b128 {vr(FA+4*ks,4)}, v7 offset:{32*ks}")
    a("v_lshl_add_u32 v10, v1, 4, s47")
    a(f"s_xor_b32 s54, s40, 1\ns_mul_i32 s54, s54, 8704\ns_add_u32 s54, s54, {L_KG}\nv_lshl_add_u32 v11, v1, 4, s54")
    for ks in range(8):
        a(f"s_waitcnt lgkmcnt({7-ks})")
        a(f"{MF32} {vr(ACC,16)}, {vr(FA+4*ks,4)}, {vr(FB+4*ks,4)}, {'0' if ks == 0 else vr(ACC,16)}")
    if OPT.get("skipkg"): a("KG_skip:\nv_lshl_add_u32 v10, v1, 4, s47\nv_mov_b32 v11, v10")
    make_tags(a, E, 12)
    def kst(vaddr, c1, c0, off):
        a(f"ds_write_b128 v{vaddr}, {vr(c1,4)} offset:{off + CP}\nds_write_b128 v{vaddr}, {vr(c0,4)} offset:{off}")
    V = lambda i: f"v{ACC+i}"
    a("s_cmp_eq_u32 s42, 0\ns_cbranch_scc0 KG_odd")
    a(f"ds_write_b128 v10, {vr(ACC+8,4)}\nds_write_b128 v10, {vr(ACC+12,4)} offset:1024")
    a(f"v_add_f32 v{ACC}, v{ACC}, v18")
    a("s_waitcnt lgkmcnt(0)"); mark(a, 3); a("s_barrier")
    a(f"ds_read_b128 {vr(FB,4)}, v11\nds_read_b128 {vr(FB+4,4)}, v11 offset:1024\ns_waitcnt lgkmcnt(0)")
    for i in (6, 4, 2, 0): a(f"v_pk_add_f32 {vr(ACC+i,2)}, {vr(ACC+i,2)}, {vr(FB+i,2)}")
    a(f"v_mov_b32_dpp v13, {V(7)} wave_shr:1 row_mask:0xf bank_mask:0xf bound_ctrl:0")
    for j in range(4): cvt(a, FA+j, V(7-2*j), V(6-2*j))
    for j in range(4): cvt(a, FA+4+j, V(6-2*j), V(5-2*j) if j < 3 else "v13")
    kst(8, FA, FA+4, 1024)
    a("s_branch CONV")
    a("KG_odd:")
    a(f"ds_write_b128 v10, {vr(ACC,4)}\nds_write_b128 v10, {vr(ACC+4,4)} offset:1024")
    a("v_and_b32 v12, 1, v1\nv_cmp_eq_u32 vcc, 0, v12")
    a("s_waitcnt lgkmcnt(0)"); mark(a, 3); a("s_barrier")
    a(f"ds_read_b128 {vr(FB,4)}, v11\nds_read_b128 {vr(FB+4,4)}, v11 offset:1024\ns_waitcnt lgkmcnt(0)")
    for i in range(0, 8, 2): a(f"v_pk_add_f32 {vr(ACC+8+i,2)}, {vr(ACC+8+i,2)}, {vr(FB+i,2)}")
    for j, (x, y) in enumerate(((10,10),(9,9),(9,8),(8,8),(10,9),(9,9),(8,8),(8,8))): cvt(a, FA+j, V(x), V(y))
    kst(8, FA, FA+4, 0)
    for q in range(2):
        v0_, v1_ = V(11+2*q), V(12+2*q); o = FA + 8 + 8*q
        a(f"v_cndmask_b32 v13, {v1_}, {v0_}, vcc")
        for j, (x, y) in enumerate(((v1_,v1_),(v1_,"v13"),(v0_,v0_),(v0_,v0_),(v1_,v1_),("v13",v0_),(v0_,v0_),(v0_,v0_))): cvt(a, o+j, x, y)
        kst(9, o, o+4, 512*(1-q))
    a("s_branch CONV")
    a("UT:")
    if PRIOU: a(f"s_setprio {PRIOU}")
    a(f"""s_lshr_b32 s42, s41, 5              ; cb
    s_and_b32 s43, s41, 31
    s_lshl_b32 s43, s43, 2
    s_and_b32 s44, s40, 3
    s_add_u32 s43, s43, s44             ; l16 block
    s_mul_i32 s45, s43, {16*1152}
    s_lshl_b32 s46, s42, 7
    s_add_u32 s45, s45, s46
    v_lshrrev_b32 v3, 3, v1
    v_mul_u32_u24 v3, 1152, v3
    v_and_b32 v4, 7, v1
    v_lshl_add_u32 v3, v4, 4, v3
    v_add_u32 v3, s45, v3               ; src
    v_add_u32 v4, 9216, v3
    s_lshr_b32 s45, s44, 1
    s_mul_i32 s45, s45, {CP}
    s_and_b32 s46, s44, 1
    s_lshl_b32 s46, s46, 11
    s_add_u32 s45, s45, s46
    s_add_u32 s45, s45, {L_CH - 16}      ; lds staging
    s_mov_b32 m0, s45
    s_waitcnt lgkmcnt(0)
    global_load_lds_dwordx4 v3, s[8:9]
    s_add_u32 m0, m0, 1024
    s_load_dword s34, s[32:33], {WS_N}
    global_load_lds_dwordx4 v4, s[8:9]""")
    mark(a, 0)
    a(f"""v_and_b32 v5, 15, v1                ; rho
    v_bfe_u32 v6, v1, 4, 1              ; g&1
    v_lshrrev_b32 v10, 5, v1            ; g>>1
    v_lshrrev_b32 v7, 2, v5
    v_lshl_add_u32 v8, v6, 3, v7
    v_lshlrev_b32 v8, 7, v8
    v_and_b32 v9, 3, v5
    v_lshl_add_u32 v8, v9, 3, v8
    v_lshl_add_u32 v8, v10, 5, v8
    v_add_u32 v8, s45, v8
    v_and_b32 v9, 1, v1
    v_lshl_add_u32 v9, v9, 1, v6        ; q
    s_lshl_b32 s46, s42, 18
    s_lshl_b32 s47, s43, 6
    s_add_u32 s46, s46, s47
    s_add_u32 s46, s46, {WS_UT}
    v_lshrrev_b32 v7, 1, v5
    v_lshl_add_u32 v7, v10, 3, v7
    v_lshlrev_b32 v7, 13, v7
    v_lshl_add_u32 v7, v9, 4, v7
    v_add_u32 v7, s46, v7               ; dst
    v_add_u32 v11, {16*8192}, v7
    s_lshl_b32 s42, s41, 13
    s_add_u32 s42, s42, {WS_UT - 4096}
    v_lshl_add_u32 v2, v0, 4, s42
    v_add_u32 v3, 4096, v2
    v_bfe_u32 v4, v0, 1, 1
    v_mul_u32_u24 v4, {CS}, v4
    v_and_b32 v5, 0xfc, v0
    v_lshl_add_u32 v4, v5, 3, v4
    v_and_b32 v5, 1, v0
    v_lshl_add_u32 v4, v5, 4, v4
    v_add_u32 v4, {L_CH + 2*CP + 448}, v4
    v_add_u32 v5, {CP + 4}, v4
    v_add_u32 v6, {CP + 4 + 2048}, v4""")
    conv_early(a)
    a(f"""s_waitcnt lgkmcnt(0)
    s_barrier
    {NONCE}""")
    make_tags(a, E, 9, q=9)
    a("s_waitcnt vmcnt(0)"); mark(a, 1)
    for it in range(2):
        a(f"ds_read_b64_tr_b16 {vr(16+4*it,2)}, v8 offset:{64*it}\nds_read_b64_tr_b16 {vr(18+4*it,2)}, v8 offset:{512+64*it}")
    for it in range(2):
        a(f"s_waitcnt lgkmcnt({2-2*it})"); tag_in(a, 16+4*it, E)
        a(f"global_store_dwordx4 v{7 if it == 0 else 11}, {vr(16+4*it,4)}, s[32:33] sc1")
    mark(a, 2)
    make_tags(a, E, 9)
    UD = 48
    backoff(a, DLU)
    poll(a, "UP_p", f"global_load_dwordx4 {vr(UD,4)}, v2, s[32:33] sc1\nglobal_load_dwordx4 {vr(UD+4,4)}, v3, s[32:33] sc1", (UD, UD+4), 14)
    for k in range(2):
        d = UD + 4*k
        a(f"ds_write_b128 v4, {vr(d,4)} offset:{2048*k}\nds_write2_b32 v{5+k}, v{d}, v{d+1} offset0:0 offset1:1\nds_write2_b32 v{5+k}, v{d+2}, v{d+3} offset0:2 offset1:3")
    mark(a, 3)
    a("s_barrier")
    a("CONV:")
    a("v_mov_b32 v9, v93\nv_mov_b32 v10, v94\ns_waitcnt vmcnt(0) lgkmcnt(0)\ns_barrier")
    late = f"""s_lshr_b32 s44, s40, 2
    v_and_b32 v5, 15, v1
    v_lshrrev_b32 v6, 4, v1
    v_and_b32 v7, 1, v1
    v_lshrrev_b32 v8, 1, v5
    s_mul_i32 s51, s40, 9216
    v_mul_u32_u24 v13, 144, v8
    v_lshl_add_u32 v13, v6, 5, v13
    v_lshl_add_u32 v13, v7, 3, v13
    v_add_u32 v13, s51, v13             ; partial write addr
    s_mul_i32 s51, s44, {PP}
    v_bfe_u32 v14, v0, 2, 6
    v_mul_u32_u24 v14, 144, v14
    v_and_b32 v15, 3, v0
    v_lshl_add_u32 v14, v15, 5, v14
    v_add_u32 v14, s51, v14             ; partial read addr
    s_lshl_b32 s51, s41, 13
    s_add_u32 s51, s51, {WS_YT}
    v_lshl_add_u32 v15, v0, 4, s51      ; yT store offset
    s_lshr_b32 s42, s41, 5              ; cb
    s_and_b32 s43, s41, 31              ; lb64
    s_lshl_b32 s46, s42, 18
    s_lshl_b32 s47, s43, 7
    s_add_u32 s46, s46, s47
    s_add_u32 s46, s46, {WS_YT}
    v_lshrrev_b32 v2, 3, v0
    v_lshlrev_b32 v2, 12, v2
    v_and_b32 v3, 7, v0
    v_lshl_add_u32 v2, v3, 4, v2
    v_add_u32 v2, s46, v2               ; yT tile source
    v_lshlrev_b32 v3, 4, v0
    v_add_u32 v3, {L_YS}, v3             ; staging write
    v_lshrrev_b32 v4, 2, v5
    v_lshl_add_u32 v4, v6, 3, v4
    v_lshlrev_b32 v4, 7, v4
    v_and_b32 v7, 3, v1
    v_lshl_add_u32 v4, v7, 3, v4
    s_lshl_b32 s46, s44, 12
    s_and_b32 s47, s40, 3
    s_lshl_b32 s48, s47, 5
    s_add_u32 s46, s46, s48
    s_add_u32 s46, s46, {L_YS}
    v_add_u32 v4, s46, v4               ; tr addr
    s_lshl_b32 s46, s43, 2
    s_add_u32 s46, s46, s47
    s_mul_i32 s46, s46, {16*2304}
    s_lshl_b32 s47, s42, 7
    s_add_u32 s46, s46, s47
    s_lshl_b32 s47, s44, 6
    s_add_u32 s46, s46, s47
    v_lshrrev_b32 v11, 2, v5
    v_xor_b32 v11, v11, v6
    v_lshlrev_b32 v11, 4, v11
    v_lshl_add_u32 v11, v5, 6, v11
    s_lshl_b32 s47, s40, 10
    v_add_u32 v11, s47, v11             ; relay write
    v_xor_b32 v12, v7, v6
    v_lshlrev_b32 v12, 4, v12
    v_lshrrev_b32 v5, 2, v1
    v_lshl_add_u32 v12, v5, 6, v12
    v_add_u32 v12, s47, v12             ; relay read
    v_mul_u32_u24 v5, 2304, v5
    v_lshl_add_u32 v5, v7, 4, v5
    v_add_u32 v5, s46, v5               ; out offset
""".split("\n")
    late = [x for x in late if x.strip()]
    mark(a, 4)
    a(f"s_setprio {int(OPT.get('prioc', 0))}")
    ACC, FA, FB = 16, 48, 80
    first = {}
    def pairs(k, st):
        for x, b in [(k, b) for b in range(k)] + [(x, k) for x in range(k)] + [(k, k)]:
            t = x + b
            if t > 7: continue
            f = (st == 0) and t not in first
            first[t] = 1
            a(f"{MF16} {vr(ACC+4*t,4)}, {vr(FA+4*x,4)}, {vr(FB+4*b,4)}, {'0' if f else vr(ACC+4*t,4)}")
            if late and len(first) > 2: a(late.pop(0))
            if late and len(late) > 40: a(late.pop(0))
    for st in range(2):
        o = 64*(1 - st)
        for k in range(8):
            a(f"ds_read_b64 {vr(FA+4*k,2)}, v9 offset:{512*(7-k)+o}\nds_read_b64 {vr(FA+4*k+2,2)}, v9 offset:{512*(7-k)+8+o}")
            a(f"ds_read_b128 {vr(FB+4*k,4)}, v10 offset:{512*k+o}")
            if k >= 4:
                a("s_waitcnt lgkmcnt(12)"); pairs(k-4, st)
        for kk in range(4, 8):
            a(f"s_waitcnt lgkmcnt({3*(7-kk)})"); pairs(kk, st)
    assert not late
    mark(a, 5)
    a(f"s_setprio {int(OPT.get('prior', PRIOA))}")
    a("s_barrier"); mark(a, 0, "ft")
    for t in range(8):
        a(f"ds_write_b64 v13, {vr(ACC+4*t,2)} offset:{1152*t}\nds_write_b64 v13, {vr(ACC+4*t+2,2)} offset:{1152*t+16}")
    a("s_waitcnt lgkmcnt(0)"); mark(a, 1, "ft"); a("s_barrier"); mark(a, 2, "ft")
    for w in range(4):
        for h in range(2): a(f"ds_read_b128 {vr(FA+8*w+4*h,4)}, v14 offset:{9216*w + 16*h}")
    a("s_waitcnt lgkmcnt(4)")
    for i in range(0, 8, 2): a(f"v_pk_add_f32 {vr(FA+i,2)}, {vr(FA+i,2)}, {vr(FA+8+i,2)}")
    a("s_waitcnt lgkmcnt(0)")
    for i in range(0, 8, 2): a(f"v_pk_add_f32 {vr(FA+16+i,2)}, {vr(FA+16+i,2)}, {vr(FA+24+i,2)}")
    for i in range(0, 8, 2): a(f"v_pk_add_f32 {vr(FA+i,2)}, {vr(FA+i,2)}, {vr(FA+16+i,2)}")
    for i in range(4): cvt(a, 16+i, f"v{FA+2*i}", f"v{FA+2*i+1}")
    tag_in(a, 16, E)
    a(f"global_store_dwordx4 v15, v[16:19], s[32:33] sc1")
    mark(a, 6)
    backoff(a, DLT)
    mark(a, 7, "ft")
    poll(a, "YT_p", "global_load_dwordx4 v[20:23], v2, s[32:33] sc1", (20,), 14)
    a("ds_write_b128 v3, v[20:23]\ns_waitcnt lgkmcnt(0)"); mark(a, 7); a("s_barrier")
    a("ds_read_b64_tr_b16 v[24:25], v4\nds_read_b64_tr_b16 v[26:27], v4 offset:512\ns_waitcnt lgkmcnt(0)")
    a("ds_write_b128 v11, v[24:27]\nds_read_b128 v[28:31], v12\ns_waitcnt lgkmcnt(0)\nglobal_store_dwordx4 v5, v[28:31], s[4:5] sc1")
    stamp_end(a)
    a("s_endpgm")

def role_b(a):
    ROLE[0] = "B"
    a("RB:")
    if OPT.get("onlya"): a("s_endpgm")
    a(f"""s_setprio {PRIO}
    v_lshlrev_b32 v2, 4, v1             ; lane*16
    s_lshl_b32 s48, s40, 10
    v_add_u32 v5, s48, v2
    s_getpc_b64 s[36:37]
    RB_pc:
    s_add_u32 s36, s36, TAB_B1-RB_pc
    s_addc_u32 s37, s37, 0
    s_cmp_lt_u32 s41, 128
    s_cselect_b32 s44, 4, 0
    s_cmp_lt_u32 s40, s44
    s_cbranch_scc0 RB_h
    s_add_u32 m0, s48, {L_B1}
    s_lshl_b32 s45, s40, 9
    global_load_lds_dwordx4 v5, s[36:37]
    s_add_u32 m0, m0, 4096
    v_add_u32 v6, 4096, v5
    global_load_lds_dwordx4 v6, s[36:37]
    s_add_u32 m0, m0, 4096
    v_add_u32 v6, 8192, v5
    global_load_lds_dwordx4 v6, s[36:37]
    s_add_u32 m0, m0, 4096
    v_add_u32 v6, 12288, v5
    global_load_lds_dwordx4 v6, s[36:37]
    s_add_u32 m0, m0, 4096
    v_add_u32 v6, 16384, v5
    global_load_lds_dwordx4 v6, s[36:37]
    s_add_u32 s45, s45, s41
    s_mul_i32 s46, s45, 1152
    s_mul_i32 s47, s40, 4608
    s_add_u32 s47, s47, {L_X}            ; x staging
    v_add_u32 v8, s46, v2
    v_cmp_gt_u32 vcc, 8, v1
    v_add_u32 v9, {1024 + 146304}, v8
    v_add_u32 v13, 1024, v8
    v_cndmask_b32 v9, v9, v13, vcc
    v_cmp_gt_u32 vcc, 16, v1
    v_add_u32 v10, {2048 + 2*146304}, v8
    v_add_u32 v13, {2048 + 146304}, v8
    v_cndmask_b32 v10, v10, v13, vcc
    v_cmp_gt_u32 vcc, 24, v1
    v_add_u32 v11, {3072 + 3*146304}, v8
    v_add_u32 v13, {3072 + 2*146304}, v8
    v_cndmask_b32 v11, v11, v13, vcc
    v_add_u32 v12, {4096 + 3*146304}, v8
    s_mov_b32 m0, s47
    s_waitcnt lgkmcnt(0)
    global_load_lds_dwordx4 v8, s[26:27]
    s_add_u32 m0, m0, 1024
    s_load_dword s34, s[32:33], {WS_N}
    global_load_lds_dwordx4 v9, s[26:27]
    s_add_u32 m0, m0, 1024
    s_nop 0
    global_load_lds_dwordx4 v10, s[26:27]
    s_add_u32 m0, m0, 1024
    s_nop 0
    global_load_lds_dwordx4 v11, s[26:27]
    s_add_u32 m0, m0, 1024
    s_mov_b32 exec_hi, 0
    global_load_lds_dwordx4 v12, s[26:27]
    s_mov_b64 exec, -1""")
    mark(a, 0)
    def common():
        a(f"""s_and_b32 s66, s41, 15              ; a'
        s_lshr_b32 s67, s41, 4
        s_lshl_b32 s67, s67, 1
        s_lshr_b32 s68, s40, 2              ; team
        s_add_u32 s67, s67, s68             ; ct
        s_and_b32 s69, s40, 3               ; w
        v_and_b32 v122, 15, v1              ; rho
        v_lshrrev_b32 v121, 4, v1           ; g
        s_lshl_b32 s50, s69, 12
        s_add_u32 s50, s50, {L_FS}
        v_add_u32 v7, s50, v2               ; FT const table (per w)
        v_add_u32 v116, {L_F8 - 32768}, v2""")
    def common2():
        srd(a, 56, 32, WS_X1, COLB); srd(a, 60, 32, WS_Y1, COLB)
        a(f"""s_mov_b32 s64, 65536
        s_mov_b32 s65, 131072
        s_mov_b32 s49, {19*8192}
        v_lshrrev_b32 v9, 2, v1
        v_mul_lo_u32 v120, v9, s49
        s_lshl_b32 s49, s41, 6
        s_lshl_b32 s50, s40, 13
        s_add_u32 s49, s49, s50
        v_and_b32 v10, 3, v1
        v_lshl_add_u32 v120, v10, 4, v120
        v_add_u32 v120, s49, v120
        v_xor_b32 v118, v10, v121
        v_lshlrev_b32 v118, 4, v118
        v_lshl_add_u32 v118, v9, 6, v118    ; Q rel
        v_lshrrev_b32 v117, 2, v122
        v_xor_b32 v117, v117, v121
        v_lshlrev_b32 v117, 4, v117
        v_lshl_add_u32 v11, v10, 2, v117
        v_lshl_add_u32 v121, v121, 8, v11   ; T rel
        v_lshl_add_u32 v117, v122, 6, v117  ; G rel
        v_add_u32 v119, s48, v117
        s_waitcnt lgkmcnt(0)
        {NONCE}""")
        make_tags(a, E, 8, q=10)
    common(); common2()
    a("s_branch B1_go")
    a("RB_h:")
    a(f"s_cmp_lt_u32 s41, 128\ns_cbranch_scc0 RB_hp\ns_setprio {int(OPT.get('prioh', 1))}\nRB_hp:")
    common()
    A_, CO, SI, F = 16, 20, 24, 36
    a(f"""v_cvt_f32_u32 v{F}, v122
    v_lshlrev_b32 v{F+1}, 2, v121
    v_and_b32 v{F+3}, 4, v{F+1}
    v_cvt_f32_u32 v{F+1}, v{F+1}           ; 4g
    s_lshl_b32 s70, s69, 1
    v_cvt_f32_u32 v{F+4}, s70             ; 2w
    v_cvt_f32_u32 v{F+5}, s66
    s_mov_b32 s71, {f32hex(8.0)}
    v_mul_f32 v{F+5}, {f32hex(1/2048)}, v{F+5}
    v_mul_f32 v{F+2}, {f32hex(1/128)}, v{F}
    v_add_f32 v{F+2}, v{F+2}, v{F+5}       ; u = (a'+16 rho)/2048
    v_mul_f32 v28, s71, v{F+2}
    v_mul_f32 v29, v{F+4}, v{F+2}
    v_add_f32 v30, v29, v{F+2}
    v_fma_f32 v{F+2}, v{F}, s71, v{F+4}
    v_mul_f32 v31, {f32hex(1/128)}, v{F+2}
    v_mul_f32 v32, v{F+2}, v{F+5}
    v_add_f32 v33, {f32hex(1/128)}, v31
    v_add_f32 v34, v32, v{F+5}""")
    def angles(base_f, st, ph=None):
        if ph is None: a(f"v_mul_f32 v{A_}, v{st}, v{base_f}")
        else: a(f"v_fma_f32 v{A_}, v{st}, v{base_f}, v{ph}")
        a(f"v_add_f32 v{A_+1}, v{A_}, v{st}\nv_fma_f32 v{A_+2}, 2.0, v{st}, v{A_}\nv_add_f32 v{A_+3}, v{A_+2}, v{st}")
    def constc(c):
        for j in range(4): a(f"v_cos_f32 v{CO+j}, v{A_+j}\nv_sin_f32 v{SI+j}, v{A_+j}")
        for j in range(4): cvt(a, c+j, f"v{CO+j}", f"v{SI+j}")
    for q, (st, ph) in enumerate(((28, 29), (28, 30), (31, 32), (33, 34))):
        angles(F+1, st, ph); constc(48+4*q)
        a(f"ds_write_b128 v7, {vr(48+4*q,4)} offset:{1024*q}")
    a(f"""s_bitcmp1_b32 s40, 0
    s_cbranch_scc1 RB_f16
    v_and_b32 v28, 7, v122
    v_cvt_f32_u32 v28, v28
    v_cvt_f32_u32 v{F+1}, v{F+3}
    v_mul_f32 v28, {f32hex(1/8)}, v28
    v_lshrrev_b32 v29, 3, v122
    v_lshrrev_b32 v30, 1, v121
    v_cmp_eq_u32 vcc, v29, v30
    v_mov_b32 v31, v116
    s_branch RB_f
    RB_f16:
    v_mul_f32 v28, {f32hex(1/16)}, v{F}
    s_mov_b64 vcc, -1
    v_add_u32 v31, 1024, v116
    RB_f:""")
    angles(F+1, 28); constc(64)
    for j in range(4): cvt(a, 68+j, f"-v{SI+j}", f"v{CO+j}")
    for j in range(4): a(f"v_cndmask_b32 v{64+j}, 0, v{64+j}, vcc")
    a(f"ds_write_b128 v31, v[64:67] offset:32768\ns_bitcmp1_b32 s40, 0\ns_cbranch_scc0 RB_f2\nds_write_b128 v31, v[68:71] offset:{32768+1024}\nRB_f2:")
    a("s_waitcnt lgkmcnt(0)")
    srd(a, 52, 28, 0, 2048*578 + 4)
    a(f"""s_load_dword s34, s[32:33], {WS_N}
    s_mov_b64 s[24:25], s[30:31]
    s_mov_b32 s26, {2048*578 + 4}
    s_mov_b32 s27, 0x20000
    s_lshl_b32 s70, s69, 9
    s_add_u32 s70, s70, s66
    s_mul_i32 s70, s70, 578
    s_lshr_b32 s71, s41, 4
    s_lshl_b32 s71, s71, 6
    s_add_u32 s70, s70, s71
    v_lshrrev_b32 v8, 2, v1
    v_mul_u32_u24 v8, {16*578}, v8
    v_and_b32 v9, 3, v1
    v_lshl_add_u32 v8, v9, 4, v8
    s_lshl_b32 s71, s69, 11
    s_add_u32 m0, s71, {L_W}
    v_add_u32 v8, s70, v8
    s_mov_b32 s70, {256*578}
    s_cmp_eq_u32 s68, 0
    s_cbranch_scc1 RB_nw
    buffer_load_dwordx4 v8, s[52:55], 0 offen lds
    s_add_u32 m0, m0, 1024
    s_nop 0
    buffer_load_dwordx4 v8, s[52:55], s70 offen lds
    s_add_u32 m0, m0, {8192 - 1024}
    s_nop 0
    buffer_load_dwordx4 v8, s[24:27], 0 offen lds
    s_add_u32 m0, m0, 1024
    s_nop 0
    buffer_load_dwordx4 v8, s[24:27], s70 offen lds
    RB_nw:""")
    X, D, T, LD, WR, WI = 8, 16, 32, 40, 48, 56
    F8C, F8S = 80, 84
    G2C = lambda e: 88 + 8*e
    G2S = lambda e: 92 + 8*e
    H2C = lambda e: (104, 64)[e]
    H2S = lambda e: (108, 68)[e]
    def ftc_read():
        a(f"ds_read_b128 {vr(F8C,4)}, v116 offset:32768")
        for q, d in enumerate((G2C(0), G2C(1), H2C(0), H2C(1))): a(f"ds_read_b128 {vr(d,4)}, v7 offset:{1024*q}")
    a("s_cmp_lt_u32 s41, 128\ns_cbranch_scc0 RB_l\ns_barrier\ns_barrier")
    common2()
    a(f"ds_read_b128 v[8:11], v116 offset:{32768+1024}\nds_read_b128 v[12:15], v116 offset:{32768+2048}")
    a("s_waitcnt vmcnt(0)\ns_branch B1_rg\nRB_l:")
    a(f"v_lshlrev_b32 v8, 6, v0\nv_min_u32 v8, {NQ3*1024 - 64}, v8\nv_add_u32 v8, {NQ1*1024}, v8\nglobal_load_dword v123, v8, s[36:37]")
    common2()
    a(f"s_waitcnt vmcnt(0)\ns_barrier")
    backoff(a, DLL)
    ftc_read()
    a("s_branch B1_done\nB1_go:\ns_waitcnt vmcnt(5)\ns_barrier")
    K = 8
    C1R, C1I, TAR, TAI, TBR, TBI, SA, SL, SH, RA, AD = K, K+4, K+8, K+12, K+16, K+20, K+24, K+36, K+48, K+60, K+64
    FR, D1 = 80, 92
    for q in (15, 16, 17, 0, 1, 2, 3, 4, 5, 6, 7, 8, 9, 10, 11, 12, 13, 14): a(f"ds_read_b128 {vr(K+4*q,4)}, v2 offset:{L_B1 + q*1024}")
    a("s_lshl_b32 s51, s40, 4\ns_waitcnt lgkmcnt(15)")
    for i in range(4): a(f"v_add_u32 v{RA+i}, s47, v{RA+i}")
    for x in range(6): a(f"v_xor_b32 v{AD+x}, s51, v{AD+x}")
    a(f"s_waitcnt lgkmcnt(0)\ns_barrier")
    a("s_waitcnt vmcnt(0)"); mark(a, 1)
    TT = [0, 3, 4, 6]
    d2s = ((D1, D1+4, D1+8), (D1+12, D1+16, D1+20))
    def trr(p):
        for t, (r0, off) in enumerate(((RA, 0), (RA+2, 0), (RA, 1152))):
            a(f"ds_read_b64_tr_b16 {vr(FR+4*t,2)}, v{r0} offset:{off+2304*p}\nds_read_b64_tr_b16 {vr(FR+4*t+2,2)}, v{r0+1} offset:{off+2304*p}")
    trr(0)
    for p in range(2):
        for t in range(3):
            a(f"s_waitcnt lgkmcnt({4-2*t + 6*p})")
            a(f"{MF16} {vr(D1+8*t,4)}, {vr(FR+4*t,4)}, {vr(C1R,4)}, 0\n{MF16} {vr(D1+8*t+4,4)}, {vr(FR+4*t,4)}, {vr(C1I,4)}, 0")
        if p == 1: a(f"ds_read_b128 {vr(C1R,4)}, v116 offset:{32768+1024}\nds_read_b128 {vr(C1I,4)}, v116 offset:{32768+2048}")
        for t in range(3):
            twiddle(a, D1+8*t, D1+8*t+4, TBR if t == 1 else TAR, TBI if t == 1 else TAI, TT, FR+4*t)
            if t == 1:
                for tau in range(3): a(f"{MF16} {vr(d2s[0][tau],4)}, {vr(SA+4*tau,4)}, {vr(FR,4)}, 0")
                for tau in range(3): a(f"{MF16} {vr(d2s[0][tau],4)}, {vr(SL+4*tau,4)}, {vr(FR+4,4)}, {vr(d2s[0][tau],4)}")
        for tau in range(3): a(f"{MF16} {vr(d2s[1][tau],4)}, {vr(SH+4*tau,4)}, {vr(FR+4,4)}, 0")
        for tau in range(3): a(f"{MF16} {vr(d2s[1][tau],4)}, {vr(SA+4*tau,4)}, {vr(FR+8,4)}, {vr(d2s[1][tau],4)}")
        if p == 0: trr(1)
        for tau in range(3):
            for o in range(2): cvt(a, d2s[0][tau]+2*o, f"v{d2s[0][tau]+2*o}", f"v{d2s[0][tau]+2*o+1}")
        for tau in range(3):
            for o in range(2): cvt(a, d2s[0][tau]+2*o+1, f"v{d2s[1][tau]+2*o}", f"v{d2s[1][tau]+2*o+1}")
        a("s_mov_b32 exec_lo, 0x1fff1fff\ns_mov_b32 exec_hi, 0x1fff1fff")
        for x in range(6): a(f"ds_write_b64 v{AD+x}, {vr(D1+2*x,2)} offset:{L_R}")
        a("s_mov_b64 exec, -1")
        if p == 0:
            for x in range(6): a(f"v_xor_b32 v{AD+x}, 8, v{AD+x}")
    a(f"B1_rg:\ns_setprio {PRIO}\ns_waitcnt lgkmcnt(0)\ns_barrier")
    mark(a, 2)
    FC, FS, SF, SD = 8, 12, 28, 40
    for j in range(3): a(f"ds_read_b128 {vr(SF+4*j,4)}, v119 offset:{L_R + 8192*j}")
    ftc_read()
    for j in range(3):
        a(f"s_waitcnt lgkmcnt({7-j})")
        a(f"{MF16} {vr(SD+8*j,4)}, {vr(SF+4*j,4)}, {vr(FC,4)}, 0\n{MF16} {vr(SD+8*j+4,4)}, {vr(SF+4*j,4)}, {vr(FS,4)}, 0")
    a("v_add_u32 v0, s48, v118")
    for j in range(3):
        for i in range(4): cvt(a, SF+4*j+i, f"v{SD+8*j+i}", f"v{SD+8*j+4+i}")
        a(f"ds_write_b128 v119, {vr(SF+4*j,4)} offset:{L_R + 8192*j}\nds_read_b128 {vr(16+4*j,4)}, v0 offset:{L_R + 8192*j}")
    for j in range(3):
        if j == 2: a("s_cmp_lt_u32 s40, 3\ns_cbranch_scc0 B1_done")
        a(f"s_waitcnt lgkmcnt({4-2*j})")
        tag_in(a, 16+4*j, E)
        a(f"buffer_store_dwordx4 {vr(16+4*j,4)}, v120, s[56:59], {'0' if j == 0 else 's%d' % (63+j)} offen sc1")
    a("B1_done:")
    mark(a, 7)
    a("s_cmp_lt_u32 s67, 19\ns_cbranch_scc0 FT_idle")
    for x in range(16): a(f"v_mov_b32 v{WR+x}, 0")
    a(f"""v_lshrrev_b32 v{T}, 5, v1
    v_bfe_u32 v{T+1}, v1, 4, 1
    s_lshl_b32 s70, s69, 7
    s_lshl_b32 s71, s68, 5
    s_add_u32 s70, s70, s71
    s_add_u32 s70, s70, {L_W - 32768}
    v_lshlrev_b32 v{T+2}, 12, v{T+1}
    v_lshl_add_u32 v{T+2}, v{T}, 9, v{T+2}
    v_lshl_add_u32 v{T+3}, v122, 1, v{T+2}
    v_add_u32 v{T+3}, s70, v{T+3}""")
    for x in range(8):
        o = 32768 + 64*(x >> 2) + 1024*(x & 3)
        a(f"ds_read_u16_d16_hi v{WR+x}, v{T+3} offset:{o}\nds_read_u16_d16_hi v{WI+x}, v{T+3} offset:{o + 8192}")
    a(f"""s_mul_i32 s70, s66, 19
    s_add_u32 s70, s70, s67
    s_lshl_b32 s70, s70, 13
    s_lshl_b32 s71, s69, 7
    s_add_u32 s70, s70, s71
    v_and_b32 v3, 0x3c, v1
    v_lshlrev_b32 v3, 7, v3
    v_and_b32 v{T+4}, 3, v1
    v_lshl_add_u32 v3, v{T+4}, 4, v3
    v_add_u32 v3, s70, v3               ; block + (8 (L>>2) + 2w)*64 + (L&3)*16
    v_lshl_add_u32 v4, v122, 4, v{T+2}
    s_lshl_b32 s70, s68, 13
    s_lshr_b32 s71, s69, 1
    s_lshl_b32 s71, s71, 8
    s_add_u32 s71, s71, s70
    s_and_b32 s72, s69, 1
    s_lshl_b32 s72, s72, 3
    s_add_u32 s71, s71, s72
    v_add_u32 v4, s71, v4
    s_lshl_b32 s71, s69, 11
    s_add_u32 s70, s70, s71
    v_add_u32 v6, s70, v2
    s_lshl_b32 s70, s40, 11
    s_add_u32 s70, s70, {L_FS}
    v_add_u32 v7, s70, v118
    v_add_u32 v72, s70, v121
    v_add_u32 v73, s70, v117
    s_mov_b32 s72, 0x8000
    s_waitcnt lgkmcnt(0)
    s_barrier""")
    for c in (G2C(0), G2C(1), F8C, H2C(0), H2C(1)):
        for i in range(4): a(f"v_pk_add_u16 v{c+4+i}, v{c+i}, s72 op_sel:[1,0] op_sel_hi:[0,1]")
    mark(a, 0, "w1"); backoff(a, DLX); mark(a, 1, "w1")
    mark(a, 2, "w1")
    poll(a, "FT_p", f"global_load_dwordx4 {vr(LD,4)}, v3, s[56:57] sc1\nglobal_load_dwordx4 {vr(LD+4,4)}, v3, s[56:57] offset:64 sc1", (LD, LD+4), T)
    mark(a, 3)
    def transpose(src, dst, vw, vr0, off):
        a(f"ds_write_b128 v{vw}, {vr(src,4)} offset:{off}")
        for i in range(4): a(f"ds_read_b32 v{dst+i}, v{vr0} offset:{off + 64*i}")
    for e in range(2): transpose(LD+4*e, X+4*e, 7, 72, 1024*e)
    DR = lambda e: D + 8*e
    DI = lambda e: D + 8*e + 4
    def stage(e, cc, cs, asA, inv):
        re, im = (DI(e), DR(e)) if inv else (DR(e), DI(e))
        for dst, k in ((re, cc), (im, cs)):
            if asA: a(f"{MF16} {vr(dst,4)}, {vr(X+4*e,4)}, {vr(k,4)}, 0")
            else: a(f"{MF16} {vr(dst,4)}, {vr(k,4)}, {vr(X+4*e,4)}, 0")
    def exch(buf, swap):
        for e in range(2):
            for i in range(4):
                lo, hi = f"v{DR(e)+i}", f"v{DI(e)+i}"
                if swap: lo, hi = hi, lo
                cvt(a, X + 2*i + e, lo, hi)
        for i in range(4): a(f"ds_write_b64 v4, {vr(X+2*i,2)} offset:{buf+1024*i}")
        a(f"s_waitcnt {'vmcnt(0) ' if swap else ''}lgkmcnt(0)"); mark(a, 2 if swap else 0, "ft"); a("s_barrier"); mark(a, 7 if swap else 1, "ft")
        for e in range(2): a(f"ds_read_b128 {vr(X+4*e,4)}, v6 offset:{buf+1024*e}")
    for e in range(2):
        a(f"s_waitcnt lgkmcnt({5-5*e})"); stage(e, G2C(e), G2S(e), False, False)
    a(f"""s_add_u32 m0, s48, {L_B3}
    s_add_u32 s36, s36, {NQ1*1024}
    s_addc_u32 s37, s37, 0
    global_load_lds_dwordx4 v5, s[36:37]
    s_add_u32 m0, m0, 8192
    v_add_u32 v74, 8192, v5
    global_load_lds_dwordx4 v74, s[36:37]
    s_cmp_lt_u32 s40, {NQ3-16}
    s_cbranch_scc0 B3_d
    s_add_u32 m0, m0, 8192
    v_add_u32 v74, 16384, v5
    global_load_lds_dwordx4 v74, s[36:37]
    B3_d:""")
    exch(L_EX, False)
    for e in range(2):
        a(f"s_waitcnt lgkmcnt({1-e})"); stage(e, F8C, F8S, False, False)
    for e in range(2):
        twiddle(a, DR(e), DI(e), WR+4*e, WI+4*e, T, X+4*e, swap=True)
        stage(e, F8C, F8S, False, True)
    exch(L_EX2, True)
    for e in range(2):
        a(f"s_waitcnt lgkmcnt({1-e})"); stage(e, H2C(e), H2S(e), True, True)
    for e in range(2):
        for i in range(4): cvt(a, X+4*e+i, f"v{DI(e)+i}", f"v{DR(e)+i}")
        a(f"ds_write_b128 v73, {vr(X+4*e,4)} offset:{1024*e}\nds_read_b128 {vr(LD+4*e,4)}, v7 offset:{1024*e}")
    for e in range(2):
        a(f"s_waitcnt lgkmcnt({2-2*e})")
        tag_in(a, LD+4*e, E)
        a(f"global_store_dwordx4 v3, {vr(LD+4*e,4)}, s[60:61] offset:{64*e} sc1")
    mark(a, 4)
    a("s_cmp_lt_u32 s41, 128\ns_cbranch_scc1 B3_go")
    stamp_end(a)
    a("s_endpgm\nFT_idle:\ns_barrier\ns_barrier\ns_barrier")
    stamp_end(a)
    a("s_endpgm\nB3_go:")
    CR, CI, TAR, TAI, TBR, TBI, EA, EL, EH, AD = 8, 32, 56, 60, 64, 68, 72, 76, 80, 84
    FA, FB = 96, 104
    SG = 96; FC, FS = 108, 112
    a(f"""    ds_read_b128 {vr(FC,4)}, v116 offset:{32768+1024}
    ds_read_b128 {vr(FS,4)}, v116 offset:{32768+2048}
    s_add_u32 s70, s48, {L_S3}
    v_add_u32 v4, s70, v118
    v_add_u32 v5, s70, v121
    v_add_u32 v7, 32768, v2""")
    a(f"""s_lshl_b32 s45, s40, 8
    s_add_u32 s45, s45, s41
    s_lshl_b32 s51, s40, 3
    s_mul_i32 s47, s45, 2304
    s_add_u32 s47, s47, 1152
    s_add_u32 s4, s4, s47
    s_addc_u32 s5, s5, 0
    s_mul_i32 s47, s40, 2304
    s_add_u32 s47, s47, {L_S3}           ; out staging
    s_cmp_lt_u32 s40, 3
    s_cselect_b32 s66, s65, s64
    s_lshr_b32 s67, s66, 3
    v_mov_b32 v121, v119
    v_add_u32 v0, s67, v4
    v_add_u32 v6, s67, v5
    v_add_u32 v122, s67, v119
    v_cmp_gt_u32 vcc, 8, v1
    v_add_u32 v95, {1024 + RS - 1152}, v2
    v_add_u32 v94, 1024, v2
    v_mov_b32 v123, v2
    v_cndmask_b32 v1, v95, v94, vcc""")
    lds = "\n".join(f"buffer_load_dwordx4 {vr(SG+4*j,4)}, v120, s[60:63], {('0', 's64', 's66')[j]} offen sc1" for j in range(3))
    TQ = lambda q: L_B3 - 32768 + q*1024
    for q in list(range(19, 22)) + [0, 1, 2, 3, 4, 5, 6, 7, 10, 11, 8, 9]: a(f"ds_read_b128 {vr(8+4*q,4)}, v7 offset:{TQ(q)}")
    a(f"s_waitcnt lgkmcnt(12)")
    for x in range(6): a(f"v_xor_b32 v{AD+x}, s51, v{AD+x}")
    for x in range(6, 10): a(f"v_add_u32 v{AD+x}, s47, v{AD+x}")
    a(f"v_mov_b32 v{AD+10}, v1\nv_mov_b32 v{AD+11}, v123")
    backoff(a, DLY)
    mark(a, 7, "b3")
    poll(a, "B3_p", lds, (SG, SG+4, SG+8), 3)
    mark(a, 5)
    transpose(SG, 116, 4, 5, 0); transpose(SG+4, 80, 4, 5, 8192); transpose(SG+8, 124, 0, 6, 0)
    XI = (116, 80, 124); PI = (116, 80, 124)
    for j in range(3):
        a(f"s_waitcnt lgkmcnt({10-5*j})")
        a(f"{MF16} {vr(56+8*j+4,4)}, {vr(FC,4)}, {vr(XI[j],4)}, 0\n{MF16} {vr(56+8*j,4)}, {vr(FS,4)}, {vr(XI[j],4)}, 0")
    for j in range(3):
        for i in range(4): cvt(a, PI[j]+i, f"v{56+8*j+i}", f"v{56+8*j+4+i}")
        a(f"ds_write_b128 v{121 if j < 2 else 122}, {vr(PI[j],4)} offset:{L_R + (8192 if j == 1 else 0)}")
    for q in range(12, 19): a(f"ds_read_b128 {vr(8+4*q,4)}, v7 offset:{TQ(q)}")
    a("s_waitcnt lgkmcnt(7)"); mark(a, 0, "b3"); a("s_barrier"); mark(a, 1, "b3")
    R = 112
    for s_ in range(6): a(f"ds_read_b64 {vr(R+2*s_,2)}, v{AD+s_} offset:{L_R}")
    a(f"""s_waitcnt vmcnt(0)
    s_or_b32 s66, s41, s40
    s_cmp_eq_u32 s66, 0
    s_cbranch_scc0 B3_nn
    v_mov_b32 v6, {WS_N}
    v_mov_b32 v7, s34
    s_mov_b64 exec, 1
    global_store_dword v6, v7, s[32:33] sc1
    s_mov_b64 exec, -1
    B3_nn:""")
    for x in (FB+2, FB+3, FB+6, FB+7): a(f"v_mov_b32 v{x}, 0")
    a("s_waitcnt lgkmcnt(2)")
    for i in range(2):
        for s_ in range(4): a(f"v_mov_b32 v{FA+4*i+s_}, v{R+2*s_+i}")
    a("s_waitcnt lgkmcnt(0)")
    for i in range(2):
        for s_ in range(2): a(f"v_mov_b32 v{FB+4*i+s_}, v{R+8+2*s_+i}")
    DT = (112, 0, 120)
    mark(a, 2, "b3")
    for i in range(2):
        tA = DT[2*i]; tB = DT[1]; blk = 1 + i
        for fr, ko, fst in ((FA, 0, True), (FB, 4, False)):
            for c, o in ((CR, 0), (CI, 4)):
                a(f"{MF16} {vr(tA+o,4)}, {vr(fr+4*i,4)}, {vr(c+ko,4)}, {'0' if fst else vr(tA+o,4)}")
                a(f"{MF16} {vr(tB+o,4)}, {vr(fr+4*i,4)}, {vr(c+8*blk+ko,4)}, {'0' if (fst and i == 0) else vr(tB+o,4)}")
    P = 8; OA = 20; OB = 32; T = FA
    twiddle(a, DT[0], DT[0]+4, TAR, TAI, T, P)
    a(f"{MF16} {vr(OA,4)}, {vr(P,4)}, {vr(EA,4)}, 0\n{MF16} {vr(OB,4)}, {vr(P,4)}, {vr(EL,4)}, 0")
    twiddle(a, DT[2], DT[2]+4, TAR, TAI, T, P+8)
    a(f"{MF16} {vr(OA+8,4)}, {vr(P+8,4)}, {vr(EA,4)}, 0\n{MF16} {vr(OB,4)}, {vr(P+8,4)}, {vr(EH,4)}, {vr(OB,4)}")
    twiddle(a, DT[1], DT[1]+4, TBR, TBI, T, P+4)
    a(f"{MF16} {vr(OA+4,4)}, {vr(P+4,4)}, {vr(EA,4)}, 0\n{MF16} {vr(OB+4,4)}, {vr(P+4,4)}, {vr(EL,4)}, 0")
    a(f"v_add_u32 v56, s47, v{AD+11}\nv_add_u32 v57, {2048 + RS - 1152}, v{AD+11}")
    for n, (o, ad, off) in enumerate(((OA, AD+6, 0), (OA+8, AD+6, 1152), (OB, AD+8, 0), (OA+4, AD+7, 0), (OB+4, AD+9, 0))):
        dd = 40 + 2*n
        cvt(a, dd, f"v{o}", f"v{o+1}"); cvt(a, dd+1, f"v{o+2}", f"v{o+3}")
        if n == 4: a("s_mov_b32 exec_lo, 0x00ff00ff\ns_mov_b32 exec_hi, 0x00ff00ff")
        a(f"ds_write_b64 v{ad}, {vr(dd,2)} offset:{off}")
    a("s_mov_b64 exec, -1")
    for j in range(3): a(f"ds_read_b128 {vr(60+4*j,4)}, v56 offset:{1024*j}")
    a(f"""s_waitcnt lgkmcnt(2)
    global_store_dwordx4 v{AD+11}, v[60:63], s[4:5] sc1
    s_waitcnt lgkmcnt(1)
    global_store_dwordx4 v{AD+10}, v[64:67], s[4:5] sc1
    s_mov_b64 exec, 0xffff
    s_waitcnt lgkmcnt(0)
    global_store_dwordx4 v57, v[68:71], s[4:5] sc1""")
    mark(a, 6)
    stamp_end(a)
    a("s_endpgm")

a = A()
a.l += [f".globl {KNAME}", ".p2align 8", f".type {KNAME},@function", f"{KNAME}:"]
stamp_start(a)
a(f"""s_load_dwordx16 s[8:23], s[0:1], 0
s_load_dwordx8 s[24:31], s[0:1], 64
s_load_dwordx2 s[4:5], s[0:1], 96
s_load_dwordx2 s[32:33], s[0:1], 112
s_cmp_ge_u32 s2, {NA+NB}
s_cbranch_scc1 EXIT
s_getpc_b64 s[6:7]
PF0:
v_lshrrev_b32 v2, 6, v0
v_lshlrev_b32 v3, 6, v0
v_readfirstlane_b32 s40, v2
v_min_u32 v3, CODE_END-PF0-4, v3
v_and_b32 v1, 63, v0
s_mov_b32 s73, 0
s_cmp_ge_u32 s40, 3
s_cbranch_scc1 NOPF
global_load_dword v123, v3, s[6:7]
NOPF:""")
if BFIRST: a(f"s_mov_b32 s41, s2\ns_cmp_lt_u32 s2, {NB}\ns_cbranch_scc1 RB\ns_sub_u32 s41, s2, {NB}")
else: a(f"s_sub_u32 s41, s2, {NA}\ns_cmp_ge_u32 s2, {NA}\ns_cbranch_scc1 RB\ns_mov_b32 s41, s2")
role_a(a)
role_b(a)
a("EXIT:\ns_endpgm\nCODE_END:")
if WSB:
    nl = []; arm = False
    for x in a.l:
        nl.append(x)
        if x in ("RA:", "UT:", "RB:", "RB_ld:"): arm = True
        if arm and x.strip() == "s_waitcnt lgkmcnt(0)":
            nl.append(f"    s_add_u32 s32, s32, {WSB}"); nl.append("    s_addc_u32 s33, s33, 0"); arm = False
    a.l = nl
if int(OPT.get("nopka", 1)):
    nl = []
    for x in a.l:
        m = re.match(r"\s*v_pk_add_f32 v\[(\d+):\d+\], v\[(\d+):\d+\], v\[(\d+):\d+\]", x)
        if m:
            d, p, q = map(int, m.groups())
            nl += [f"    v_add_f32 v{d}, v{p}, v{q}", f"    v_add_f32 v{d+1}, v{p+1}, v{q+1}"]
        else: nl.append(x)
    a.l = nl
if STAMP and MSET == "st":
    nl = []
    for i, x in enumerate(a.l):
        if x == "RB_gen:": nl.append("    s_memtime s[82:83]")
        nl.append(x)
        if x == "RB_ld:": nl.append("    s_memtime s[78:79]")
        if x.strip() == "global_load_lds_dwordx4 v3, s[26:27]": nl.insert(len(nl)-1, "    s_memtime s[80:81]")
        if x == "B1_go:": nl.append("    s_memtime s[84:85]")
        if x.strip().startswith("ds_read_b128 v[68:71], v2 offset:15360"): nl.insert(len(nl)-1, "    s_memtime s[86:87]")
        if x.strip().startswith("ds_read_b64_tr_b16 v[80:81], v68 offset:0"): nl.insert(len(nl)-2, "    s_memtime s[88:89]"); nl.insert(len(nl)-1, "    s_memtime s[90:91]")
    a.l = nl
body, tot = pad(a.l)
def dump(t):
    w = t.reshape(-1)
    return "\n".join(".long " + ",".join("0x%x" % x for x in w[i:i+16]) for i in range(0, len(w), 16))
tabs = ".p2align 8\nTAB_B1:\n" + dump(TB1) + "\n" + dump(TB3) + "\n"
hdr = f"""; S4 long-conv (Toeplitz MFMA) + GFNet 2D spectral filter (MFMA FFT), one persistent launch. Generated by my own generator (gen14.py).
; @launch grid=({NA+NB},1,1) block=(512,1,1) lds={LDS}
.amdgcn_target "amdgcn-amd-amdhsa--gfx950"
.text
"""
kd = f""".section .rodata,"a"
.p2align 6
.amdhsa_kernel {KNAME}
  .amdhsa_next_free_vgpr 128
  .amdhsa_next_free_sgpr 102
  .amdhsa_accum_offset 128
  .amdhsa_group_segment_fixed_size 0
  .amdhsa_kernarg_size 120
  .amdhsa_user_sgpr_count 2
  .amdhsa_user_sgpr_kernarg_segment_ptr 1
  .amdhsa_system_sgpr_workgroup_id_x 1
.end_amdhsa_kernel
"""
open(sys.argv[1], "w").write(hdr + "\n".join(body) + "\n" + tabs + kd)
print("nop states inserted", tot)
```

```python
import sys, math, re
import numpy as np
from asmlib import *
OPT = dict(a.split("=") if "=" in a else (a, "1") for a in sys.argv[2:])
STAMP = int(OPT.get("stamp", 0))
KNAME = "concat_heads__ssm_conv_s4__spectral_gfnet__prompt_kernel"
WS_N = 0; WS_X1 = 0x1000; WS_Y1 = 0x290000; WS_UT = 0x520000; WS_YT = 0x761000
WS_STAMP = 0x1000000
WSB = int(OPT.get('wsb', '0'), 0)
COLB = 160*16384
LOG2E = 1.4426950408889634
MF16 = "v_mfma_f32_16x16x32_bf16"; MF32 = "v_mfma_f32_32x32x16_bf16"
NB = 160; NA = 288
BFIRST = int(OPT.get('bfirst', 1))
TMO = 3000
DLX = int(OPT.get('dlx', 10)); DLY = int(OPT.get('dly', 24)); DLU = int(OPT.get('dlu', 18)); DLT = int(OPT.get('dlt', 24)); DLL = int(OPT.get('dll', 28))
def backoff(a, n):
    if n: a(f's_sleep {n}')
TLB = int(OPT.get('tlb', 0))
PRIO = int(OPT.get('prio', 3)); PRIOA = int(OPT.get('prioa', 3)); ACKW = int(OPT.get('ackw', 1)); PRIOU = int(OPT.get('priou', 3))
def bf(x):
    u = np.asarray(x, np.float32).view(np.uint32) if np.ndim(x) else np.array([x], np.float32).view(np.uint32)
    return ((u + 0x7FFF + ((u >> 16) & 1)) >> 16).astype(np.uint32)
def pk(lo, hi): return bf(np.asarray(lo, np.float64).astype(np.float32)) | (bf(np.asarray(hi, np.float64).astype(np.float32)) << 16)
def f32(x): return np.asarray(x, np.float64).astype(np.float32).view(np.uint32)
L = np.arange(64); RHO = L & 15; G = L >> 4
C = lambda rev: np.cos(2*np.pi*rev); S = lambda rev: np.sin(2*np.pi*rev)
def quad(f): return np.stack([np.asarray(f(i), np.uint32) for i in range(4)], axis=1)
def swz(kk): return kk*64 + ((kk >> 2) & 3)*16
def tab_b1():
    q = []
    d1 = lambda j: 4*G + j if j < 4 else 16 + 4*(G & 1) + (j - 4)
    m = lambda j: np.ones(64) if j < 4 else (G < 2)*1.0
    q.append(quad(lambda i: pk(C(d1(2*i)*RHO/24)*m(2*i), C(d1(2*i+1)*RHO/24)*m(2*i+1))))
    q.append(quad(lambda i: pk(-S(d1(2*i)*RHO/24)*m(2*i), -S(d1(2*i+1)*RHO/24)*m(2*i+1))))
    dA = lambda i: 4*G + i
    dB = lambda i: 16 + 4*(G & 1) + i
    for d in (dA, dB):
        q.append(quad(lambda i: f32(C(RHO*d(i)/576)))); q.append(quad(lambda i: f32(-S(RHO*d(i)/576))))
    for d, mk in ((dA, np.ones(64)), (dB, (G < 2)*1.0), (dB, (G >= 2)*1.0)):
        for tau in range(3):
            k2 = 8*tau + (RHO >> 1); ph = (RHO & 1)*np.where(k2 < 12, 0.25, -0.25)
            q.append(quad(lambda i: pk(mk*C(d(i)*k2/24 + ph), mk*S(d(i)*k2/24 + ph))))
    ra0 = (4*G + (RHO >> 2))*48 + (RHO & 3)*8; ra1 = (16 + 4*(G & 1) + (RHO >> 2))*48 + (RHO & 3)*8
    ex = ((RHO & 3) >> 1)*1152 + 32 + (RHO & 1)*8 - (RHO & 3)*8
    q.append(np.stack([ra0, ra1, ra0 + ex, ra1 + ex], axis=1).astype(np.uint32))
    ad = []
    for tau in range(3):
        for o in range(2):
            k2 = 8*tau + 2*G + o; k = np.minimum(RHO, 12) + 24*k2
            ad.append(swz(np.where(k2 < 12, k, 576 - k)))
    ad += [0*L, 0*L]
    q.append(np.stack(ad[:4], axis=1).astype(np.uint32)); q.append(np.stack(ad[4:], axis=1).astype(np.uint32))
    return np.stack(q)
RS = 128*2304
def tab_b3():
    q = []
    sg = np.where(G < 2, 1.0, -1.0)
    cols = ((RHO, np.ones(64)), (16 + (RHO & 7), (RHO < 8)*1.0), (16 + (RHO & 7), (RHO >= 8)*1.0))
    for im in range(2):
        for d2, mk in cols:
            for st in range(2):
                def f(i):
                    s_ = 4*st + i
                    if s_ >= 6: return np.zeros(64, np.uint32)
                    rev = d2*(6*G + s_)/24
                    return pk(mk*S(rev), mk*sg*C(rev)) if im else pk(mk*C(rev), -mk*sg*S(rev))
                q.append(quad(f))
    sc = 1.0/(2048*576)
    for d2, _ in cols[:2]:
        q.append(quad(lambda i: f32(sc*C(d2*(4*G + i)/576)))); q.append(quad(lambda i: f32(sc*S(d2*(4*G + i)/576))))
    for d1, mk in cols:
        def f(i):
            k1 = 4*G + i; wg = np.where((k1 == 0) | (k1 == 12), 1.0, np.where(k1 > 12, 0.0, 2.0))*mk
            return pk(wg*C(d1*k1/24), -wg*S(d1*k1/24))
        q.append(quad(f))
    ad = []
    for s_ in range(6):
        k = np.minimum(RHO, 12) + 24*(6*G + s_)
        ad.append(swz(np.where(G < 2, k, 576 - k)))
    xB = 32 + 8*(G & 1) + (G >> 1)*1152
    hi = 768 + 48*(RHO & 7)
    ad += [48*RHO + 8*G, 48*RHO + xB]
    q.append(np.stack(ad[:4], axis=1).astype(np.uint32)); q.append(np.stack(ad[4:], axis=1).astype(np.uint32))
    q.append(np.stack([hi + (RHO >> 3)*1152 + 8*G, hi + xB, 0*L, 0*L], axis=1).astype(np.uint32))
    return np.stack(q)
TB1, TB3 = tab_b1(), tab_b3()
NQ1, NQ3 = len(TB1), len(TB3)
assert (NQ1, NQ3) == (18, 22)
L_B1 = 0; L_R = 0; L_X = 20480; L_FS = 38912; L_EX = 0; L_B3 = 55296; L_S3 = 35840; L_EX2 = 19456; L_F8 = 77824; L_W = 55296
CP = 5216; CS = 4*CP; L_CH = 64; L_KG = L_CH + 2*CS; PP = 36864; L_YS = 73728
LDS = 81920

def cmul(a, o, x, y, conj=False):
    if int(OPT.get("nopkk", 0)):
        a(f"v_mul_f32 v{o}, v{x}, v{y}\nv_mul_f32 v{o+1}, v{x+1}, v{y}")
        if conj: a(f"v_fmac_f32 v{o}, v{x+1}, v{y+1}\nv_fma_f32 v{o+1}, -v{x}, v{y+1}, v{o+1}")
        else: a(f"v_fma_f32 v{o}, -v{x+1}, v{y+1}, v{o}\nv_fmac_f32 v{o+1}, v{x}, v{y+1}")
        return
    a(f"v_pk_mul_f32 {vr(o,2)}, {vr(x,2)}, {vr(y,2)} op_sel:[0,0] op_sel_hi:[1,0]")
    a(f"v_pk_fma_f32 {vr(o,2)}, {vr(x,2)}, {vr(y,2)}, {vr(o,2)} op_sel:[1,1,0] op_sel_hi:[0,1,1] {'neg_hi' if conj else 'neg_lo'}:[1,0,0]")
def cvt(a, d, lo, hi): a(f"v_cvt_pk_bf16_f32 v{d}, {lo}, {hi}")
def srd(a, s, base, off, nrec):
    if off == 0: a(f"s_mov_b32 s{s}, s{base}\ns_mov_b32 s{s+1}, s{base+1}")
    else: a(f"s_add_u32 s{s}, s{base}, {off}\ns_addc_u32 s{s+1}, s{base+1}, 0")
    a(f"s_mov_b32 s{s+2}, {nrec}\ns_mov_b32 s{s+3}, 0x20000")
MSET = OPT.get("mset", "")
PROBE = OPT.get("probe", ""); ROLE = ["A"]
def mark(a, i, grp=""):
    if PROBE and grp == "" and PROBE == ROLE[0] + str(i): a("s_memrealtime s[96:97]\ns_mov_b32 s95, 1")
    if MSET == "st": return
    if STAMP and (grp == MSET or (grp == "" and not (MSET and i in (0, 1, 2, 7)))): a(f"s_memtime s[{78+2*i}:{79+2*i}]")
SPIN = int(OPT.get("spin", 0)); SPC = [0]
def stamp_start(a):
    if PROBE: a("s_mov_b32 s95, 0")
    if SPIN: a("s_memrealtime s[96:97]")
    if STAMP:
        a("s_memrealtime s[96:97]\ns_memtime s[76:77]")
        for i in range(8): a(f"s_mov_b64 s[{78+2*i}:{79+2*i}], 0")
def stamp_end(a):
    if PROBE:
        SPC[0] += 1
        a(f"""s_cmp_eq_u32 s95, 0
        s_cbranch_scc1 SQ{SPC[0]}
        s_waitcnt vmcnt(0) lgkmcnt(0)
        SP{SPC[0]}:
        s_sleep 4
        s_memrealtime s[98:99]
        s_waitcnt lgkmcnt(0)
        s_sub_u32 s94, s98, s96
        s_cmp_lt_u32 s94, 2000
        s_cbranch_scc1 SP{SPC[0]}
        SQ{SPC[0]}:""")
    if SPIN:
        SPC[0] += 1
        a(f"""s_waitcnt vmcnt(0) lgkmcnt(0)
        SP{SPC[0]}:
        s_sleep 4
        s_memrealtime s[98:99]
        s_waitcnt lgkmcnt(0)
        s_sub_u32 s94, s98, s96
        s_cmp_lt_u32 s94, {SPIN}
        s_cbranch_scc1 SP{SPC[0]}""")
    if not STAMP: return
    a(f"""s_waitcnt vmcnt(0) lgkmcnt(0)
    s_memrealtime s[98:99]
    s_memtime s[94:95]
    s_mov_b64 exec, -1
    s_lshl_b32 s100, s2, 3
    s_add_u32 s100, s100, s40
    s_lshl_b32 s100, s100, 6
    s_add_u32 s100, s100, {WS_STAMP}
    v_mov_b32 v1, s100
    s_waitcnt lgkmcnt(0)
    v_mov_b32 v2, s96
    v_mov_b32 v3, s98""")
    for i in range(9): a(f"s_sub_u32 s{78+2*i}, s{78+2*i}, s76\nv_mov_b32 v{4+i}, s{78+2*i}")
    a("""v_mov_b32 v13, s73
    s_getreg_b32 s78, hwreg(HW_REG_HW_ID)
    s_getreg_b32 s79, hwreg(HW_REG_XCC_ID)
    v_mov_b32 v14, s78
    v_mov_b32 v15, s79
    s_mov_b64 exec, 1
    global_store_dwordx2 v1, v[14:15], s[32:33] offset:48
    global_store_dwordx4 v1, v[2:5], s[32:33]
    global_store_dwordx4 v1, v[6:9], s[32:33] offset:16
    global_store_dwordx4 v1, v[10:13], s[32:33] offset:32""")
def twiddle(a, dr, di, tr, ti, t, P, swap=False):
    if isinstance(t, int): t = [t, t+1, t+2, t+3]
    for i in range(4): a(f"v_mul_f32 v{t[i]}, v{dr+i}, v{ti+i}\nv_mul_f32 v{dr+i}, v{dr+i}, v{tr+i}")
    for i in range(4): a(f"v_fma_f32 v{dr+i}, -v{di+i}, v{ti+i}, v{dr+i}\nv_fma_f32 v{di+i}, v{di+i}, v{tr+i}, v{t[i]}")
    for i in range(4): cvt(a, P + i, f"v{(di if swap else dr)+i}", f"v{(dr if swap else di)+i}")
def make_tags(a, E, t, q="quad"):
    if q == "quad": a(f"v_and_b32 v{t}, 3, v0\nv_lshlrev_b32 v{t}, 3, v{t}")
    elif q == "grp": a(f"v_lshrrev_b32 v{t}, 1, v1\nv_and_b32 v{t}, 24, v{t}")
    else: a(f"v_lshlrev_b32 v{t}, 3, v{q}")
    a(f"v_bfe_u32 v{t}, s34, v{t}, 8\nv_lshl_or_b32 v{t}, v{t}, 15, v{t}")
    for i in range(4):
        if i: a(f"v_lshrrev_b32 v{E+i}, {2*i}, v{t}\nv_and_b32 v{E+i}, 0x10001, v{E+i}")
        else: a(f"v_and_b32 v{E}, 0x10001, v{t}")
    a("s_mov_b32 s35, 0xfffefffe")
def tag_in(a, d, E):
    for i in range(4): a(f"v_and_or_b32 v{d+i}, v{d+i}, s35, v{E+i}")
def tag_chk(a, acc, quads, E):
    first = True
    for d in quads:
        for i in range(4):
            if first: a(f"v_xor_b32 v{acc}, v{d+i}, v{E+i}"); first = False
            else: a(f"v_bitop3_b32 v{acc}, v{acc}, v{d+i}, v{E+i} bitop3:0xf6")

E = 124
NONCE = "s_add_u32 s34, s34, 0x9e3779b9"
SLP = int(OPT.get("slp", 2))
PD = int(OPT.get("pd", 1)); PSL = int(OPT.get("psl", 8))
def poll(a, lbl, loads, quads, acc, extra=None, mode="quad"):
    n = len(loads.split("\n"))
    def check():
        tag_chk(a, acc, quads, E)
        a(f"v_and_b32 v{acc}, 0x10001, v{acc}\nv_cmp_ne_u32 vcc, 0, v{acc}\ns_cbranch_vccz {lbl}go")
        if mode == "quad":
            a(f"v_or_b32_dpp v{acc}, v{acc}, v{acc} quad_perm:[1,0,3,2] row_mask:0xf bank_mask:0xf")
            a(f"s_add_u32 s73, s73, 1")
            a(f"v_or_b32_dpp v{acc}, v{acc}, v{acc} quad_perm:[2,3,0,1] row_mask:0xf bank_mask:0xf")
            a(f"v_cmp_ne_u32 vcc, 0, v{acc}\ns_cmp_gt_u32 s73, {TMO}\ns_mov_b64 exec, vcc")
        else:
            a(f"s_or_b32 s71, vcc_lo, vcc_hi\ns_lshr_b32 s72, s71, 16\ns_or_b32 s71, s71, s72\ns_pack_ll_b32_b16 s71, s71, s71")
            a(f"s_add_u32 s73, s73, 1\ns_cmp_gt_u32 s73, {TMO}\ns_mov_b32 exec_lo, s71\ns_mov_b32 exec_hi, s71")
    a(f"{lbl}x:"); a(loads); a(f"s_waitcnt vmcnt(0)\n{lbl}c:\ns_mov_b32 s74, 0")
    a(f"{lbl}l:")
    check()
    a(f"s_cbranch_scc1 {lbl}to")
    if PD > 1:
        a(f"s_cmp_lg_u32 s74, 0\ns_cbranch_scc1 {lbl}s\ns_mov_b32 s74, 1")
        for _ in range(PD - 1): a(loads); a(f"s_sleep {PSL}")
        a(f"{lbl}s:")
    if PD == 1: a("s_sleep 1")
    a(loads)
    a(f"s_mov_b64 exec, -1\ns_waitcnt vmcnt({n*(PD-1)})\ns_branch {lbl}l\n{lbl}to:\ns_mov_b64 exec, -1\n{lbl}go:")

TOUCH = [0x800, 0x1ff000 + 0x82800, 0x400000 + 0x110800, 0x760800, 0x9a1800]
def tlb_touch(a, va, vd):
    a(f"v_mov_b32 v{va}, {TOUCH[0]}")
    for i in range(1, 5): a(f"s_mov_b32 s60, {TOUCH[i]}\nv_writelane_b32 v{va}, s60, {i}")
    a(f"global_load_dword v{vd}, v{va}, s[32:33]")

def conv_early(a):
    a(f"""s_and_b32 s55, s40, 3
    s_lshl_b32 s55, s55, 7
    s_lshr_b32 s56, s40, 2
    s_mul_i32 s56, s56, {CS}
    s_sub_u32 s55, s56, s55
    v_and_b32 v93, 1, v1
    v_mul_u32_u24 v94, {CP}, v93
    v_lshrrev_b32 v95, 4, v1
    v_lshl_add_u32 v93, v95, 4, v94
    v_lshlrev_b32 v95, 4, v95
    v_sub_u32 v94, v95, v94
    v_bfe_u32 v95, v1, 1, 3
    v_lshl_add_u32 v94, v95, 6, v94
    v_lshlrev_b32 v95, 3, v95
    v_sub_u32 v93, v93, v95
    s_add_u32 s56, s55, {L_CH + 4088 - 3584 - 64}
    v_add_u32 v93, s56, v93             ; A addr (second step; first = +64)
    s_add_u32 s56, s55, {L_CH + 3*CP + 448 - 64}
    v_add_u32 v94, s56, v94             ; B addr""")

def role_a(a):
    a("RA:")
    if OPT.get("onlyb"): a("s_endpgm")
    a(f"s_setprio {PRIOA}")
    a("s_cmp_ge_u32 s40, 4\ns_cbranch_scc1 UT")
    a(f"""v_mov_b32 v10, 0
    v_mov_b32 v11, 0
    v_mov_b32 v12, 0
    v_mov_b32 v13, 0
    v_mov_b32 v14, 0
    v_mov_b32 v15, 0
    s_lshr_b32 s46, s40, 1
    s_and_b32 s42, s40, 1               ; hf
    s_lshl_b32 s43, s41, 9
    s_lshl_b32 s44, s40, 7
    s_add_u32 s43, s43, s44
    v_lshl_add_u32 v3, v1, 1, s43
    s_lshl_b32 s45, s41, 2
    s_mul_i32 s47, s40, 8704
    s_add_u32 s47, s47, {L_KG}
    s_waitcnt lgkmcnt(0)
    global_load_short_d16_hi v10, v3, s[10:11]
    global_load_short_d16_hi v11, v3, s[12:13]
    global_load_short_d16_hi v12, v3, s[14:15]
    global_load_short_d16_hi v13, v3, s[16:17]
    global_load_short_d16_hi v14, v3, s[18:19]
    global_load_short_d16_hi v15, v3, s[20:21]
    ;TLBA
    s_load_dword s48, s[22:23], s45
    s_load_dword s49, s[24:25], s45
    s_load_dword s34, s[32:33], {WS_N}""")
    if TLB: tlb_touch(a, 92, 92)
    mark(a, 0)
    a(f"""s_sub_u32 m0, s47, {L_KG}
    v_and_b32 v5, 31, v1               ; r
    v_lshrrev_b32 v6, 5, v1            ; h
    v_mul_u32_u24 v7, 272, v5
    v_lshl_add_u32 v7, v6, 4, v7
    v_add_u32 v7, s47, v7
    s_mul_i32 s50, s46, {CS}
    s_add_u32 s50, s50, {L_CH}
    v_lshlrev_b32 v8, 4, v5
    v_lshlrev_b32 v9, 9, v6
    v_add_u32 v8, v8, v9
    v_add_u32 v9, v8, v9
    s_add_u32 s51, s50, 3056
    v_sub_u32 v8, s51, v8
    s_add_u32 s51, s50, 1520
    v_sub_u32 v9, s51, v9
    v_mov_b32 v20, 0
    v_mov_b32 v21, 0
    v_mov_b32 v22, 0
    v_mov_b32 v23, 0
    s_cmp_eq_u32 s42, 0
    s_cselect_b32 s51, 4096, 0
    s_cselect_b32 s52, 0, {2*CP}
    s_add_u32 s51, s51, s52
    s_add_u32 s51, s51, s50
    v_mul_u32_u24 v16, {CP}, v6
    v_min_u32 v17, 27, v5
    v_lshl_add_u32 v16, v17, 4, v16
    v_add_u32 v16, s51, v16
    v_mov_b32 v17, s50
    ds_write_b128 v16, v[20:23]
    ds_write_b32 v17, v20 offset:{3*CP + 448}
    ds_write_b128 v20, v[20:23]
    ds_write_b128 v20, v[20:23] offset:16""")
    conv_early(a)
    a(f"""s_waitcnt lgkmcnt(0)
    s_barrier
    {NONCE}
    s_lshl_b32 s52, s48, 16
    s_and_b32 s48, s48, 0xffff0000
    s_lshl_b32 s53, s49, 16
    s_and_b32 s49, s49, 0xffff0000
    s_cmp_eq_u32 s46, 0
    s_cselect_b32 s48, s52, s48        ; log_dt
    s_cselect_b32 s49, s53, s49        ; Dskip
    v_mov_b32 v16, {f32hex(LOG2E)}
    v_mul_f32 v17, s48, v16
    v_exp_f32 v17, v17
    v_cmp_eq_u32 vcc, 0, v1
    v_mov_b32 v18, s49
    v_cvt_pk_bf16_f32 v17, v17, v17
    v_cndmask_b32 v18, 0, v18, vcc
    v_and_b32 v17, 0xffff0000, v17     ; dt
    v_mul_f32 v16, v17, v16
    v_mul_f32 v19, 0.15915494, v17
    s_waitcnt vmcnt({5 if TLB else 4})
    v_mul_f32 v20, v16, v10
    v_mul_f32 v21, v19, v11""")
    Z1, Z8, Z256 = 22, 24, 26
    a(f"v_mul_f32 v28, {f32hex(8.0)}, v20\nv_mul_f32 v29, {f32hex(8.0)}, v21\nv_mul_f32 v30, {f32hex(256.0)}, v20\nv_mul_f32 v31, {f32hex(256.0)}, v21")
    a("v_fract_f32 v29, v29\nv_fract_f32 v21, v21\nv_fract_f32 v31, v31")
    a("v_exp_f32 v28, v28\nv_cos_f32 v24, v29\nv_sin_f32 v25, v29")
    a("v_exp_f32 v20, v20\nv_cos_f32 v22, v21\nv_sin_f32 v23, v21")
    a("v_exp_f32 v30, v30\nv_cos_f32 v26, v31\nv_sin_f32 v27, v31")
    a(f"s_waitcnt vmcnt({1 if TLB else 0})"); mark(a, 1)
    a("""v_mul_f32 v32, v14, v12
    v_mul_f32 v33, v14, v13
    v_fma_f32 v32, -v15, v13, v32
    v_fma_f32 v33, v15, v12, v33
    v_mul_f32 v24, v24, v28
    v_mul_f32 v25, v25, v28
    v_mul_f32 v32, v32, v17
    v_mul_f32 v33, -v33, v17
    v_mul_f32 v22, v22, v20
    v_mul_f32 v23, v23, v20
    v_mul_f32 v26, v26, v30
    v_mul_f32 v27, v27, v30""")
    Zr = {1: Z1, 8: Z8, 256: Z256}; nxt = [36]
    colops = [("keep", e, x, y) for e, x, y in [(2,1,1),(512,256,256),(3,2,1),(4,2,2),(768,512,256),(1024,512,512),(5,4,1),(6,4,2),(7,4,3),(1280,1024,256),(1536,1024,512),(1792,1024,768)]]
    colops += [("tmp", e, x, y) for e, x, y in [(258,256,2),(260,256,4),(262,256,6),(264,256,8),(516,512,4),(520,512,8),(772,768,4),(776,768,8),(1032,1024,8),(1288,1280,8),(1544,1536,8),(1800,1792,8)]]
    for k, e, x, y in colops:
        if k == "keep": Zr[e] = nxt[0]; nxt[0] += 2
    TMP = nxt[0]; nxt[0] += 4
    PK = {}
    for e in [0,1,2,3,4,5,6,7,512,516,520,1024,1032,1280,1288,256,258,260,262,264,768,772,776,1536,1544,1792,1800]:
        PK[e] = nxt[0]; nxt[0] += 1
    CV = nxt[0]; nxt[0] += 2
    colq = [lambda: a(f"v_mov_b32 v{PK[0]}, 0x3f80")]
    for e in (1, 256): colq.append(lambda e=e: cvt(a, PK[e], f"v{Zr[e]}", f"v{Zr[e]+1}"))
    ti = 0
    for k, e, x, y in colops:
        o = Zr[e] if k == "keep" else TMP + 2*(ti & 1)
        if k != "keep": ti += 1
        colq.append(lambda o=o, x=x, y=y: cmul(a, o, Zr[x], Zr[y]))
        colq.append(lambda o=o, e=e: cvt(a, PK[e], f"v{o}", f"v{o+1}"))
    Q = [32, 34]
    if TLB: CV = 4; assert True
    if OPT.get("skipkg"): a("s_sub_u32 s60, s41, 96\ns_cmp_lt_u32 s60, 128\ns_cbranch_scc1 KG_skip")
    for r in range(32):
        q = Q[r & 1]
        cvt(a, CV + (r & 1), f"v{q}", f"v{q+1}")
        if r < 31: cmul(a, Q[(r+1) & 1], q, Z8, conj=True)
        a(f"ds_write_addtid_b32 v{CV + (r&1)} offset:{L_KG + r*272}")
        if r == int(OPT.get("kgsw", 31)): a("s_setprio 1")
        for _ in range(2):
            if colq: colq.pop(0)()
    while colq: colq.pop(0)()
    mark(a, 2)
    FB = 20; ACC = 52; FA = (nxt[0] + 3) & ~3
    assert FA + 32 <= 128
    for ks in range(8): a(f"ds_read_b128 {vr(FB+4*ks,4)}, v7 offset:{32*ks}")
    slots = [[0,1,2,3,4,5,6,7,512,516,520,1024,1032,1280,1288],[256,256,258,260,260,260,262,264,768,772,776,1536,1544,1792,1800]]
    for h in range(2):
        for i, e in enumerate(slots[h]):
            a(f"ds_write_addtid_b32 v{PK[e]} offset:{L_KG + (8*(i >> 2) + 4*h + (i & 3))*272}")
    for ks in range(8): a(f"ds_read_b128 {vr(FA+4*ks,4)}, v7 offset:{32*ks}")
    a("v_lshl_add_u32 v10, v1, 4, s47")
    a(f"s_xor_b32 s54, s40, 1\ns_mul_i32 s54, s54, 8704\ns_add_u32 s54, s54, {L_KG}\nv_lshl_add_u32 v11, v1, 4, s54")
    for ks in range(8):
        a(f"s_waitcnt lgkmcnt({7-ks})")
        a(f"{MF32} {vr(ACC,16)}, {vr(FA+4*ks,4)}, {vr(FB+4*ks,4)}, {'0' if ks == 0 else vr(ACC,16)}")
    if OPT.get("skipkg"): a("KG_skip:\nv_lshl_add_u32 v10, v1, 4, s47\nv_mov_b32 v11, v10")
    make_tags(a, E, 12)
    def kst(vaddr, c1, c0, off):
        a(f"ds_write_b128 v{vaddr}, {vr(c1,4)} offset:{off + CP}\nds_write_b128 v{vaddr}, {vr(c0,4)} offset:{off}")
    def pairwait(lbl):
        a(f"""s_lshl_b32 s55, s40, 2
        v_mov_b32 v12, s55
        v_mov_b32 v13, s34
        ds_write_b32 v12, v13 offset:16
        v_xor_b32 v12, 4, v12
        v_mov_b32 v14, 0
        s_mov_b32 s74, 0
        s_branch {lbl}f
        {lbl}:
        s_sleep {int(OPT.get("pws", 2))}
        {lbl}f:
        ds_read_b32 v15, v12 offset:16
        ds_read_b128 {vr(FA+8,4)}, v14
        s_add_u32 s74, s74, 1
        s_cmp_gt_u32 s74, {16*TMO}
        s_cbranch_scc1 {lbl}e
        s_waitcnt lgkmcnt(0)
        v_xor_b32 v15, v13, v15""")
        for i in range(4): a(f"v_bitop3_b32 v15, v15, v{FA+8+i}, v13 bitop3:0xf6")
        a(f"v_cmp_ne_u32 vcc, 0, v15\ns_cbranch_vccnz {lbl}\n{lbl}e:")
    V = lambda i: f"v{ACC+i}"
    a("s_cmp_eq_u32 s42, 0\ns_cbranch_scc0 KG_odd")
    a(f"ds_write_b128 v10, {vr(ACC+8,4)}\nds_write_b128 v10, {vr(ACC+12,4)} offset:1024")
    a(f"v_add_f32 v{ACC}, v{ACC}, v18")
    mark(a, 3); pairwait("KG_we")
    a(f"ds_read_b128 {vr(FB,4)}, v11\nds_read_b128 {vr(FB+4,4)}, v11 offset:1024\ns_waitcnt lgkmcnt(0)")
    for i in (6, 4, 2, 0): a(f"v_pk_add_f32 {vr(ACC+i,2)}, {vr(ACC+i,2)}, {vr(FB+i,2)}")
    a(f"v_mov_b32_dpp v13, {V(7)} wave_shr:1 row_mask:0xf bank_mask:0xf bound_ctrl:0")
    for j in range(4): cvt(a, FA+j, V(7-2*j), V(6-2*j))
    for j in range(4): cvt(a, FA+4+j, V(6-2*j), V(5-2*j) if j < 3 else "v13")
    kst(8, FA, FA+4, 1024)
    a("s_branch CONV")
    a("KG_odd:")
    a(f"ds_write_b128 v10, {vr(ACC,4)}\nds_write_b128 v10, {vr(ACC+4,4)} offset:1024")
    mark(a, 3); pairwait("KG_wo")
    a("v_and_b32 v12, 1, v1\nv_cmp_eq_u32 vcc, 0, v12")
    a(f"ds_read_b128 {vr(FB,4)}, v11\nds_read_b128 {vr(FB+4,4)}, v11 offset:1024\ns_waitcnt lgkmcnt(0)")
    for i in range(0, 8, 2): a(f"v_pk_add_f32 {vr(ACC+8+i,2)}, {vr(ACC+8+i,2)}, {vr(FB+i,2)}")
    for j, (x, y) in enumerate(((10,10),(9,9),(9,8),(8,8),(10,9),(9,9),(8,8),(8,8))): cvt(a, FA+j, V(x), V(y))
    kst(8, FA, FA+4, 0)
    for q in range(2):
        v0_, v1_ = V(11+2*q), V(12+2*q); o = FA + 8 + 8*q
        a(f"v_cndmask_b32 v13, {v1_}, {v0_}, vcc")
        for j, (x, y) in enumerate(((v1_,v1_),(v1_,"v13"),(v0_,v0_),(v0_,v0_),(v1_,v1_),("v13",v0_),(v0_,v0_),(v0_,v0_))): cvt(a, o+j, x, y)
        kst(9, o, o+4, 512*(1-q))
    a("s_branch CONV")
    a("UT:")
    if PRIOU: a(f"s_setprio {PRIOU}")
    a(f"""s_lshr_b32 s42, s41, 5              ; cb
    s_and_b32 s43, s41, 31
    s_lshl_b32 s43, s43, 2
    s_and_b32 s44, s40, 3
    s_add_u32 s43, s43, s44             ; l16 block
    s_mul_i32 s45, s43, {16*1152}
    s_lshl_b32 s46, s42, 7
    s_add_u32 s45, s45, s46
    v_lshrrev_b32 v3, 3, v1
    v_mul_u32_u24 v3, 1152, v3
    v_and_b32 v4, 7, v1
    v_lshl_add_u32 v3, v4, 4, v3
    v_add_u32 v3, s45, v3               ; src
    v_add_u32 v4, 9216, v3
    s_lshr_b32 s45, s44, 1
    s_mul_i32 s45, s45, {CP}
    s_and_b32 s46, s44, 1
    s_lshl_b32 s46, s46, 11
    s_add_u32 s45, s45, s46
    s_add_u32 s45, s45, {L_CH - 16}      ; lds staging
    s_mov_b32 m0, s45
    s_waitcnt lgkmcnt(0)
    global_load_lds_dwordx4 v3, s[8:9]
    s_add_u32 m0, m0, 1024
    s_load_dword s34, s[32:33], {WS_N}
    global_load_lds_dwordx4 v4, s[8:9]""")
    mark(a, 0)
    a(f"""v_and_b32 v5, 15, v1                ; rho
    v_bfe_u32 v6, v1, 4, 1              ; g&1
    v_lshrrev_b32 v10, 5, v1            ; g>>1
    v_lshrrev_b32 v7, 2, v5
    v_lshl_add_u32 v8, v6, 3, v7
    v_lshlrev_b32 v8, 7, v8
    v_and_b32 v9, 3, v5
    v_lshl_add_u32 v8, v9, 3, v8
    v_lshl_add_u32 v8, v10, 5, v8
    v_add_u32 v8, s45, v8
    v_and_b32 v9, 1, v1
    v_lshl_add_u32 v9, v9, 1, v6        ; q
    s_lshl_b32 s46, s42, 18
    s_lshl_b32 s47, s43, 6
    s_add_u32 s46, s46, s47
    s_add_u32 s46, s46, {WS_UT}
    v_lshrrev_b32 v7, 1, v5
    v_lshl_add_u32 v7, v10, 3, v7
    v_lshlrev_b32 v7, 13, v7
    v_lshl_add_u32 v7, v9, 4, v7
    v_add_u32 v7, s46, v7               ; dst
    v_add_u32 v11, {16*8192}, v7
    s_lshl_b32 s42, s41, 13
    s_add_u32 s42, s42, {WS_UT - 4096}
    v_lshl_add_u32 v2, v0, 4, s42
    v_add_u32 v3, 4096, v2
    v_bfe_u32 v4, v0, 1, 1
    v_mul_u32_u24 v4, {CS}, v4
    v_and_b32 v5, 0xfc, v0
    v_lshl_add_u32 v4, v5, 3, v4
    v_and_b32 v5, 1, v0
    v_lshl_add_u32 v4, v5, 4, v4
    v_add_u32 v4, {L_CH + 2*CP + 448}, v4
    v_add_u32 v5, {CP + 4}, v4
    v_add_u32 v6, {CP + 4 + 2048}, v4""")
    conv_early(a)
    a(f"""s_waitcnt lgkmcnt(0)
    s_barrier
    {NONCE}""")
    make_tags(a, E, 9, q=9)
    a("s_waitcnt vmcnt(0)"); mark(a, 1)
    for it in range(2):
        a(f"ds_read_b64_tr_b16 {vr(16+4*it,2)}, v8 offset:{64*it}\nds_read_b64_tr_b16 {vr(18+4*it,2)}, v8 offset:{512+64*it}")
    for it in range(2):
        a(f"s_waitcnt lgkmcnt({2-2*it})"); tag_in(a, 16+4*it, E)
        a(f"global_store_dwordx4 v{7 if it == 0 else 11}, {vr(16+4*it,4)}, s[32:33] sc1")
    mark(a, 2)
    a("s_lshl_b32 s44, s44, 2\nv_mov_b32 v9, s44\nv_mov_b32 v10, s34\nds_write_b32 v9, v10")
    make_tags(a, E, 9)
    UD = 48
    backoff(a, DLU)
    poll(a, "UP_p", f"global_load_dwordx4 {vr(UD,4)}, v2, s[32:33] sc1\nglobal_load_dwordx4 {vr(UD+4,4)}, v3, s[32:33] sc1", (UD, UD+4), 14)
    for k in range(2):
        d = UD + 4*k
        a(f"ds_write_b128 v4, {vr(d,4)} offset:{2048*k}\nds_write2_b32 v{5+k}, v{d}, v{d+1} offset0:0 offset1:1\nds_write2_b32 v{5+k}, v{d+2}, v{d+3} offset0:2 offset1:3")
    mark(a, 3)
    a("CONV:")
    a("v_mov_b32 v9, v93\nv_mov_b32 v10, v94\ns_waitcnt vmcnt(0) lgkmcnt(0)\ns_barrier")
    late = f"""s_lshr_b32 s44, s40, 2
    v_and_b32 v5, 15, v1
    v_lshrrev_b32 v6, 4, v1
    v_and_b32 v7, 1, v1
    v_lshrrev_b32 v8, 1, v5
    s_mul_i32 s51, s40, 9216
    v_mul_u32_u24 v13, 144, v8
    v_lshl_add_u32 v13, v6, 5, v13
    v_lshl_add_u32 v13, v7, 3, v13
    v_add_u32 v13, s51, v13             ; partial write addr
    s_mul_i32 s51, s44, {PP}
    v_bfe_u32 v14, v0, 2, 6
    v_mul_u32_u24 v14, 144, v14
    v_and_b32 v15, 3, v0
    v_lshl_add_u32 v14, v15, 5, v14
    v_add_u32 v14, s51, v14             ; partial read addr
    s_lshl_b32 s51, s41, 13
    s_add_u32 s51, s51, {WS_YT}
    v_lshl_add_u32 v15, v0, 4, s51      ; yT store offset
    s_lshr_b32 s42, s41, 5              ; cb
    s_and_b32 s43, s41, 31              ; lb64
    s_lshl_b32 s46, s42, 18
    s_lshl_b32 s47, s43, 7
    s_add_u32 s46, s46, s47
    s_add_u32 s46, s46, {WS_YT}
    v_lshrrev_b32 v2, 3, v0
    v_lshlrev_b32 v2, 12, v2
    v_and_b32 v3, 7, v0
    v_lshl_add_u32 v2, v3, 4, v2
    v_add_u32 v2, s46, v2               ; yT tile source
    v_lshlrev_b32 v3, 4, v0
    v_add_u32 v3, {L_YS}, v3             ; staging write
    v_lshrrev_b32 v4, 2, v5
    v_lshl_add_u32 v4, v6, 3, v4
    v_lshlrev_b32 v4, 7, v4
    v_and_b32 v7, 3, v1
    v_lshl_add_u32 v4, v7, 3, v4
    s_lshl_b32 s46, s44, 12
    s_and_b32 s47, s40, 3
    s_lshl_b32 s48, s47, 5
    s_add_u32 s46, s46, s48
    s_add_u32 s46, s46, {L_YS}
    v_add_u32 v4, s46, v4               ; tr addr
    s_lshl_b32 s46, s43, 2
    s_add_u32 s46, s46, s47
    s_mul_i32 s46, s46, {16*2304}
    s_lshl_b32 s47, s42, 7
    s_add_u32 s46, s46, s47
    s_lshl_b32 s47, s44, 6
    s_add_u32 s46, s46, s47
    v_lshrrev_b32 v11, 2, v5
    v_xor_b32 v11, v11, v6
    v_lshlrev_b32 v11, 4, v11
    v_lshl_add_u32 v11, v5, 6, v11
    s_lshl_b32 s47, s40, 10
    v_add_u32 v11, s47, v11             ; relay write
    v_xor_b32 v12, v7, v6
    v_lshlrev_b32 v12, 4, v12
    v_lshrrev_b32 v5, 2, v1
    v_lshl_add_u32 v12, v5, 6, v12
    v_add_u32 v12, s47, v12             ; relay read
    v_mul_u32_u24 v5, 2304, v5
    v_lshl_add_u32 v5, v7, 4, v5
    v_add_u32 v5, s46, v5               ; out offset
""".split("\n")
    late = [x for x in late if x.strip()]
    mark(a, 4)
    a(f"s_setprio {int(OPT.get('prioc', 0))}")
    ACC, FA, FB = 16, 48, 80
    first = {}
    ORD = (3, 4, 2, 5, 1, 6, 7, 0)
    def rd(k, st):
        o = 64*(1 - st)
        a(f"ds_read_b64 {vr(FA+4*k,2)}, v9 offset:{512*(7-k)+o}\nds_read_b64 {vr(FA+4*k+2,2)}, v9 offset:{512*(7-k)+8+o}")
        a(f"ds_read_b128 {vr(FB+4*k,4)}, v10 offset:{512*k+o}")
    def mm(x, b):
        t = x + b
        f = t not in first
        first[t] = 1
        a(f"{MF16} {vr(ACC+4*t,4)}, {vr(FA+4*x,4)}, {vr(FB+4*b,4)}, {'0' if f else vr(ACC+4*t,4)}")
        if late and len(first) > 1: a(late.pop(0))
        if late and len(late) > 40: a(late.pop(0))
    for k in ORD[:5]: rd(k, 0)
    for st in range(2):
        have = []
        for n, k in enumerate(ORD[:7]):
            if st == 0:
                a(f"s_waitcnt lgkmcnt({12 if n < 4 else 3*(7-n)})")
            else:
                a(f"s_waitcnt lgkmcnt({min(15, 3*(7-n))})")
            ps = [(k, k)] + [p for h in have for p in ((k, h), (h, k))]
            first_done = False
            for x, b in ps:
                if x + b <= 7: mm(x, b)
            have.append(k)
            if st == 0 and n < 3: rd(ORD[5+n], 0)
        a("s_waitcnt lgkmcnt(0)")
        for k in ORD[:7]:
            mm(k, 0); mm(0, k)
            if st == 0: rd(k, 1)
        mm(0, 0)
        if st == 0: rd(0, 1)
    assert not late
    mark(a, 5)
    a(f"s_setprio {int(OPT.get('prior', 1))}")
    a("s_barrier"); mark(a, 0, "ft")
    for t in range(8):
        a(f"ds_write_b64 v13, {vr(ACC+4*t,2)} offset:{1152*t}\nds_write_b64 v13, {vr(ACC+4*t+2,2)} offset:{1152*t+16}")
    a("s_waitcnt lgkmcnt(0)"); mark(a, 1, "ft"); a("s_barrier"); mark(a, 2, "ft")
    for w in range(4):
        for h in range(2): a(f"ds_read_b128 {vr(FA+8*w+4*h,4)}, v14 offset:{9216*w + 16*h}")
    a("s_waitcnt lgkmcnt(4)")
    for i in range(0, 8, 2): a(f"v_pk_add_f32 {vr(FA+i,2)}, {vr(FA+i,2)}, {vr(FA+8+i,2)}")
    a("s_waitcnt lgkmcnt(0)")
    for i in range(0, 8, 2): a(f"v_pk_add_f32 {vr(FA+16+i,2)}, {vr(FA+16+i,2)}, {vr(FA+24+i,2)}")
    for i in range(0, 8, 2): a(f"v_pk_add_f32 {vr(FA+i,2)}, {vr(FA+i,2)}, {vr(FA+16+i,2)}")
    for i in range(4): cvt(a, 16+i, f"v{FA+2*i}", f"v{FA+2*i+1}")
    tag_in(a, 16, E)
    a(f"global_store_dwordx4 v15, v[16:19], s[32:33] sc1")
    mark(a, 6)
    backoff(a, DLT)
    mark(a, 7, "ft")
    poll(a, "YT_p", "global_load_dwordx4 v[20:23], v2, s[32:33] sc1", (20,), 14)
    a("ds_write_b128 v3, v[20:23]\ns_waitcnt lgkmcnt(0)"); mark(a, 7); a("s_barrier")
    a("ds_read_b64_tr_b16 v[24:25], v4\nds_read_b64_tr_b16 v[26:27], v4 offset:512\ns_waitcnt lgkmcnt(0)")
    a("ds_write_b128 v11, v[24:27]\nds_read_b128 v[28:31], v12\ns_waitcnt lgkmcnt(0)\nglobal_store_dwordx4 v5, v[28:31], s[4:5] sc1")
    stamp_end(a)
    a("s_endpgm")

def role_b(a):
    ROLE[0] = "B"
    a("RB:")
    if OPT.get("onlya"): a("s_endpgm")
    a(f"""s_setprio {PRIO}
    v_lshlrev_b32 v2, 4, v1             ; lane*16
    s_lshl_b32 s48, s40, 10
    v_add_u32 v5, s48, v2
    s_getpc_b64 s[36:37]
    RB_pc:
    s_add_u32 s36, s36, TAB_B1-RB_pc
    s_addc_u32 s37, s37, 0
    s_cmp_lt_u32 s41, 128
    s_cselect_b32 s44, 4, 0
    s_cmp_lt_u32 s40, s44
    s_cbranch_scc0 RB_h
    s_add_u32 m0, s48, {L_B1}
    s_lshl_b32 s45, s40, 9
    global_load_lds_dwordx4 v5, s[36:37]
    s_add_u32 m0, m0, 4096
    v_add_u32 v6, 4096, v5
    global_load_lds_dwordx4 v6, s[36:37]
    s_add_u32 m0, m0, 4096
    v_add_u32 v6, 8192, v5
    global_load_lds_dwordx4 v6, s[36:37]
    s_add_u32 m0, m0, 4096
    v_add_u32 v6, 12288, v5
    global_load_lds_dwordx4 v6, s[36:37]
    s_add_u32 m0, m0, 4096
    v_add_u32 v6, 16384, v5
    global_load_lds_dwordx4 v6, s[36:37]
    s_add_u32 s45, s45, s41
    s_mul_i32 s46, s45, 1152
    s_mul_i32 s47, s40, 4608
    s_add_u32 s47, s47, {L_X}            ; x staging
    v_add_u32 v8, s46, v2
    v_cmp_gt_u32 vcc, 8, v1
    v_add_u32 v9, {1024 + 146304}, v8
    v_add_u32 v13, 1024, v8
    v_cndmask_b32 v9, v9, v13, vcc
    v_cmp_gt_u32 vcc, 16, v1
    v_add_u32 v10, {2048 + 2*146304}, v8
    v_add_u32 v13, {2048 + 146304}, v8
    v_cndmask_b32 v10, v10, v13, vcc
    v_cmp_gt_u32 vcc, 24, v1
    v_add_u32 v11, {3072 + 3*146304}, v8
    v_add_u32 v13, {3072 + 2*146304}, v8
    v_cndmask_b32 v11, v11, v13, vcc
    v_add_u32 v12, {4096 + 3*146304}, v8
    s_mov_b32 m0, s47
    s_waitcnt lgkmcnt(0)
    global_load_lds_dwordx4 v8, s[26:27]
    s_add_u32 m0, m0, 1024
    s_load_dword s34, s[32:33], {WS_N}
    global_load_lds_dwordx4 v9, s[26:27]
    s_add_u32 m0, m0, 1024
    s_nop 0
    global_load_lds_dwordx4 v10, s[26:27]
    s_add_u32 m0, m0, 1024
    s_nop 0
    global_load_lds_dwordx4 v11, s[26:27]
    s_add_u32 m0, m0, 1024
    s_mov_b32 exec_hi, 0
    global_load_lds_dwordx4 v12, s[26:27]
    s_mov_b64 exec, -1""")
    mark(a, 0)
    def common():
        a(f"""s_and_b32 s66, s41, 15              ; a'
        s_lshr_b32 s67, s41, 4
        s_lshl_b32 s67, s67, 1
        s_lshr_b32 s68, s40, 2              ; team
        s_add_u32 s67, s67, s68             ; ct
        s_and_b32 s69, s40, 3               ; w
        v_and_b32 v122, 15, v1              ; rho
        v_lshrrev_b32 v121, 4, v1           ; g
        s_lshl_b32 s50, s69, 12
        s_add_u32 s50, s50, {L_FS}
        v_add_u32 v7, s50, v2               ; FT const table (per w)
        v_add_u32 v116, {L_F8 - 32768}, v2""")
    def common2():
        srd(a, 56, 32, WS_X1, COLB); srd(a, 60, 32, WS_Y1, COLB)
        a(f"""s_mov_b32 s64, 65536
        s_mov_b32 s65, 131072
        s_mov_b32 s49, {10*16384}
        v_lshrrev_b32 v9, 2, v1
        v_mul_lo_u32 v120, v9, s49
        s_lshl_b32 s49, s41, 7
        s_lshr_b32 s50, s40, 1
        s_lshl_b32 s50, s50, 14
        s_add_u32 s49, s49, s50
        s_and_b32 s50, s40, 1
        s_lshl_b32 s50, s50, 6
        s_add_u32 s49, s49, s50
        v_and_b32 v10, 3, v1
        v_lshl_add_u32 v120, v10, 4, v120
        v_add_u32 v120, s49, v120
        v_xor_b32 v118, v10, v121
        v_lshlrev_b32 v118, 4, v118
        v_lshl_add_u32 v118, v9, 6, v118    ; Q rel
        v_lshrrev_b32 v117, 2, v122
        v_xor_b32 v117, v117, v121
        v_lshlrev_b32 v117, 4, v117
        v_lshl_add_u32 v11, v10, 2, v117
        v_lshl_add_u32 v121, v121, 8, v11   ; T rel
        v_lshl_add_u32 v117, v122, 6, v117  ; G rel
        v_add_u32 v119, s48, v117
        s_waitcnt lgkmcnt(0)
        {NONCE}""")
        make_tags(a, E, 8, q=10)
    common(); common2()
    a("s_branch B1_go")
    a("RB_h:")
    a(f"s_cmp_lt_u32 s41, 128\ns_cbranch_scc0 RB_hp\ns_setprio {int(OPT.get('prioh', 0))}\nRB_hp:")
    common()
    A_, CO, SI, F = 16, 20, 24, 36
    a(f"""v_cvt_f32_u32 v{F}, v122
    v_lshlrev_b32 v{F+1}, 2, v121
    v_and_b32 v{F+3}, 4, v{F+1}
    v_cvt_f32_u32 v{F+1}, v{F+1}           ; 4g
    s_lshl_b32 s70, s69, 1
    v_cvt_f32_u32 v{F+4}, s70             ; 2w
    v_cvt_f32_u32 v{F+5}, s66
    s_mov_b32 s71, {f32hex(8.0)}
    v_mul_f32 v{F+5}, {f32hex(1/2048)}, v{F+5}
    v_mul_f32 v{F+2}, {f32hex(1/128)}, v{F}
    v_add_f32 v{F+2}, v{F+2}, v{F+5}       ; u = (a'+16 rho)/2048
    v_mul_f32 v28, s71, v{F+2}
    v_mul_f32 v29, v{F+4}, v{F+2}
    v_add_f32 v30, v29, v{F+2}
    v_fma_f32 v{F+2}, v{F}, s71, v{F+4}
    v_mul_f32 v31, {f32hex(1/128)}, v{F+2}
    v_mul_f32 v32, v{F+2}, v{F+5}
    v_add_f32 v33, {f32hex(1/128)}, v31
    v_add_f32 v34, v32, v{F+5}""")
    def angles(base_f, st, ph=None):
        if ph is None: a(f"v_mul_f32 v{A_}, v{st}, v{base_f}")
        else: a(f"v_fma_f32 v{A_}, v{st}, v{base_f}, v{ph}")
        a(f"v_add_f32 v{A_+1}, v{A_}, v{st}\nv_fma_f32 v{A_+2}, 2.0, v{st}, v{A_}\nv_add_f32 v{A_+3}, v{A_+2}, v{st}")
    def constc(c):
        for j in range(4): a(f"v_cos_f32 v{CO+j}, v{A_+j}\nv_sin_f32 v{SI+j}, v{A_+j}")
        for j in range(4): cvt(a, c+j, f"v{CO+j}", f"v{SI+j}")
    for q, (st, ph) in enumerate(((28, 29), (28, 30), (31, 32), (33, 34))):
        angles(F+1, st, ph); constc(48+4*q)
        a(f"ds_write_b128 v7, {vr(48+4*q,4)} offset:{1024*q}")
    a(f"""s_bitcmp1_b32 s40, 0
    s_cbranch_scc1 RB_f16
    v_and_b32 v28, 7, v122
    v_cvt_f32_u32 v28, v28
    v_cvt_f32_u32 v{F+1}, v{F+3}
    v_mul_f32 v28, {f32hex(1/8)}, v28
    v_lshrrev_b32 v29, 3, v122
    v_lshrrev_b32 v30, 1, v121
    v_cmp_eq_u32 vcc, v29, v30
    v_mov_b32 v31, v116
    s_branch RB_f
    RB_f16:
    v_mul_f32 v28, {f32hex(1/16)}, v{F}
    s_mov_b64 vcc, -1
    v_add_u32 v31, 1024, v116
    RB_f:""")
    angles(F+1, 28); constc(64)
    for j in range(4): cvt(a, 68+j, f"-v{SI+j}", f"v{CO+j}")
    for j in range(4): a(f"v_cndmask_b32 v{64+j}, 0, v{64+j}, vcc")
    a(f"ds_write_b128 v31, v[64:67] offset:32768\ns_bitcmp1_b32 s40, 0\ns_cbranch_scc0 RB_f2\nds_write_b128 v31, v[68:71] offset:{32768+1024}\nRB_f2:")
    a("s_waitcnt lgkmcnt(0)")
    if TLB: tlb_touch(a, 10, 123)
    srd(a, 52, 28, 0, 2048*578 + 4)
    a(f"""s_load_dword s34, s[32:33], {WS_N}
    s_mov_b64 s[24:25], s[30:31]
    s_mov_b32 s26, {2048*578 + 4}
    s_mov_b32 s27, 0x20000
    s_lshl_b32 s70, s69, 9
    s_add_u32 s70, s70, s66
    s_mul_i32 s70, s70, 578
    s_lshr_b32 s71, s41, 4
    s_lshl_b32 s71, s71, 6
    s_add_u32 s70, s70, s71
    v_lshrrev_b32 v8, 2, v1
    v_mul_u32_u24 v8, {16*578}, v8
    v_and_b32 v9, 3, v1
    v_lshl_add_u32 v8, v9, 4, v8
    s_lshl_b32 s71, s69, 11
    s_add_u32 m0, s71, {L_W}
    v_add_u32 v8, s70, v8
    s_mov_b32 s70, {256*578}
    s_cmp_eq_u32 s68, 0
    s_cbranch_scc1 RB_nw
    buffer_load_dwordx4 v8, s[52:55], 0 offen lds
    s_add_u32 m0, m0, 1024
    s_nop 0
    buffer_load_dwordx4 v8, s[52:55], s70 offen lds
    s_add_u32 m0, m0, {8192 - 1024}
    s_nop 0
    buffer_load_dwordx4 v8, s[24:27], 0 offen lds
    s_add_u32 m0, m0, 1024
    s_nop 0
    buffer_load_dwordx4 v8, s[24:27], s70 offen lds
    RB_nw:""")
    X, D, T, LD, WR, WI = 8, 16, 32, 40, 48, 56
    F8C, F8S = 80, 84
    G2C = lambda e: 88 + 8*e
    G2S = lambda e: 92 + 8*e
    H2C = lambda e: (104, 64)[e]
    H2S = lambda e: (108, 68)[e]
    def ftc_read():
        a(f"ds_read_b128 {vr(F8C,4)}, v116 offset:32768")
        for q, d in enumerate((G2C(0), G2C(1), H2C(0), H2C(1))): a(f"ds_read_b128 {vr(d,4)}, v7 offset:{1024*q}")
    a("s_cmp_lt_u32 s41, 128\ns_cbranch_scc0 RB_l\ns_barrier\ns_barrier")
    common2()
    a(f"ds_read_b128 v[8:11], v116 offset:{32768+1024}\nds_read_b128 v[12:15], v116 offset:{32768+2048}")
    a("s_waitcnt vmcnt(0)\ns_branch B1_rg\nRB_l:")
    a(f"v_lshlrev_b32 v8, 6, v0\nv_min_u32 v8, {NQ3*1024 - 64}, v8\nv_add_u32 v8, {NQ1*1024}, v8\nglobal_load_dword v123, v8, s[36:37]")
    common2()
    a(f"s_waitcnt vmcnt(0)\ns_barrier")
    backoff(a, DLL)
    ftc_read()
    a("s_branch B1_done\nB1_go:\ns_waitcnt vmcnt(5)\ns_barrier")
    a(f"s_setprio {int(OPT.get('priob1', 2))}")
    K = 8
    C1R, C1I, TAR, TAI, TBR, TBI, SA, SL, SH, RA, AD = K, K+4, K+8, K+12, K+16, K+20, K+24, K+36, K+48, K+60, K+64
    FR, D1 = 80, 92
    for q in (15, 16, 17, 0, 1, 2, 3, 4, 5, 6, 7, 8, 9, 10, 11, 12, 13, 14): a(f"ds_read_b128 {vr(K+4*q,4)}, v2 offset:{L_B1 + q*1024}")
    a("s_lshl_b32 s51, s40, 4\ns_waitcnt lgkmcnt(15)")
    for i in range(4): a(f"v_add_u32 v{RA+i}, s47, v{RA+i}")
    for x in range(6): a(f"v_xor_b32 v{AD+x}, s51, v{AD+x}")
    a(f"s_waitcnt lgkmcnt(0)\ns_barrier")
    a("s_waitcnt vmcnt(0)"); mark(a, 1)
    TT = [0, 3, 4, 6]
    d2s = ((D1, D1+4, D1+8), (D1+12, D1+16, D1+20))
    def trr(p):
        for t, (r0, off) in enumerate(((RA, 0), (RA+2, 0), (RA, 1152))):
            a(f"ds_read_b64_tr_b16 {vr(FR+4*t,2)}, v{r0} offset:{off+2304*p}\nds_read_b64_tr_b16 {vr(FR+4*t+2,2)}, v{r0+1} offset:{off+2304*p}")
    trr(0)
    for p in range(2):
        for t in range(3):
            a(f"s_waitcnt lgkmcnt({4-2*t + 6*p})")
            a(f"{MF16} {vr(D1+8*t,4)}, {vr(FR+4*t,4)}, {vr(C1R,4)}, 0\n{MF16} {vr(D1+8*t+4,4)}, {vr(FR+4*t,4)}, {vr(C1I,4)}, 0")
        if p == 1: a(f"ds_read_b128 {vr(C1R,4)}, v116 offset:{32768+1024}\nds_read_b128 {vr(C1I,4)}, v116 offset:{32768+2048}")
        for t in range(3):
            twiddle(a, D1+8*t, D1+8*t+4, TBR if t == 1 else TAR, TBI if t == 1 else TAI, TT, FR+4*t)
            if t == 1:
                for tau in range(3): a(f"{MF16} {vr(d2s[0][tau],4)}, {vr(SA+4*tau,4)}, {vr(FR,4)}, 0")
                for tau in range(3): a(f"{MF16} {vr(d2s[0][tau],4)}, {vr(SL+4*tau,4)}, {vr(FR+4,4)}, {vr(d2s[0][tau],4)}")
        for tau in range(3): a(f"{MF16} {vr(d2s[1][tau],4)}, {vr(SH+4*tau,4)}, {vr(FR+4,4)}, 0")
        for tau in range(3): a(f"{MF16} {vr(d2s[1][tau],4)}, {vr(SA+4*tau,4)}, {vr(FR+8,4)}, {vr(d2s[1][tau],4)}")
        if p == 0: trr(1)
        for tau in range(3):
            for o in range(2): cvt(a, d2s[0][tau]+2*o, f"v{d2s[0][tau]+2*o}", f"v{d2s[0][tau]+2*o+1}")
        for tau in range(3):
            for o in range(2): cvt(a, d2s[0][tau]+2*o+1, f"v{d2s[1][tau]+2*o}", f"v{d2s[1][tau]+2*o+1}")
        a("s_mov_b32 exec_lo, 0x1fff1fff\ns_mov_b32 exec_hi, 0x1fff1fff")
        for x in range(6): a(f"ds_write_b64 v{AD+x}, {vr(D1+2*x,2)} offset:{L_R}")
        a("s_mov_b64 exec, -1")
        if p == 0:
            for x in range(6): a(f"v_xor_b32 v{AD+x}, 8, v{AD+x}")
    a(f"B1_rg:\ns_setprio {PRIO}\ns_waitcnt lgkmcnt(0)\ns_barrier")
    mark(a, 2)
    FC, FS, SF, SD = 8, 12, 28, 40
    for j in range(3): a(f"ds_read_b128 {vr(SF+4*j,4)}, v119 offset:{L_R + 8192*j}")
    ftc_read()
    for j in range(3):
        a(f"s_waitcnt lgkmcnt({7-j})")
        a(f"{MF16} {vr(SD+8*j,4)}, {vr(SF+4*j,4)}, {vr(FC,4)}, 0\n{MF16} {vr(SD+8*j+4,4)}, {vr(SF+4*j,4)}, {vr(FS,4)}, 0")
    a("v_add_u32 v0, s48, v118")
    for j in range(3):
        for i in range(4): cvt(a, SF+4*j+i, f"v{SD+8*j+i}", f"v{SD+8*j+4+i}")
        a(f"ds_write_b128 v119, {vr(SF+4*j,4)} offset:{L_R + 8192*j}\nds_read_b128 {vr(16+4*j,4)}, v0 offset:{L_R + 8192*j}")
    for j in range(3):
        if j == 2: a("s_cmp_lt_u32 s40, 3\ns_cbranch_scc0 B1_done")
        a(f"s_waitcnt lgkmcnt({4-2*j})")
        tag_in(a, 16+4*j, E)
        a(f"buffer_store_dwordx4 {vr(16+4*j,4)}, v120, s[56:59], {'0' if j == 0 else 's%d' % (63+j)} offen sc1")
    a("B1_done:")
    mark(a, 7)
    a("s_cmp_lt_u32 s67, 19\ns_cbranch_scc0 FT_idle")
    for x in range(16): a(f"v_mov_b32 v{WR+x}, 0")
    a(f"""v_lshrrev_b32 v{T}, 5, v1
    v_bfe_u32 v{T+1}, v1, 4, 1
    s_lshl_b32 s70, s69, 7
    s_lshl_b32 s71, s68, 5
    s_add_u32 s70, s70, s71
    s_add_u32 s70, s70, {L_W - 32768}
    v_lshlrev_b32 v{T+2}, 12, v{T+1}
    v_lshl_add_u32 v{T+2}, v{T}, 9, v{T+2}
    v_lshl_add_u32 v{T+3}, v122, 1, v{T+2}
    v_add_u32 v{T+3}, s70, v{T+3}""")
    for x in range(8):
        o = 32768 + 64*(x >> 2) + 1024*(x & 3)
        a(f"ds_read_u16_d16_hi v{WR+x}, v{T+3} offset:{o}\nds_read_u16_d16_hi v{WI+x}, v{T+3} offset:{o + 8192}")
    a(f"""s_mul_i32 s70, s66, 10
    s_lshr_b32 s71, s41, 4
    s_add_u32 s70, s70, s71
    s_lshl_b32 s70, s70, 14
    s_lshl_b32 s71, s69, 8
    s_add_u32 s70, s70, s71
    s_lshl_b32 s71, s68, 6
    s_add_u32 s70, s70, s71
    v_and_b32 v3, 0x3c, v1
    v_lshlrev_b32 v3, 8, v3
    v_and_b32 v{T+4}, 3, v1
    v_lshl_add_u32 v3, v{T+4}, 4, v3
    v_add_u32 v3, s70, v3               ; block + (8 (L>>2) + 2w)*64 + (L&3)*16
    v_lshl_add_u32 v4, v122, 4, v{T+2}
    s_lshl_b32 s70, s68, 13
    s_lshr_b32 s71, s69, 1
    s_lshl_b32 s71, s71, 8
    s_add_u32 s71, s71, s70
    s_and_b32 s72, s69, 1
    s_lshl_b32 s72, s72, 3
    s_add_u32 s71, s71, s72
    v_add_u32 v4, s71, v4
    s_lshl_b32 s71, s69, 11
    s_add_u32 s70, s70, s71
    v_add_u32 v6, s70, v2
    s_lshl_b32 s70, s40, 11
    s_add_u32 s70, s70, {L_FS}
    v_add_u32 v7, s70, v118
    v_add_u32 v72, s70, v121
    v_add_u32 v73, s70, v117
    s_mov_b32 s72, 0x8000
    s_waitcnt lgkmcnt(0)
    s_barrier""")
    a(f"""s_add_u32 m0, s48, {L_B3}
    s_add_u32 s36, s36, {NQ1*1024}
    s_addc_u32 s37, s37, 0
    global_load_lds_dwordx4 v5, s[36:37]
    s_add_u32 m0, m0, 8192
    v_add_u32 v74, 8192, v5
    global_load_lds_dwordx4 v74, s[36:37]
    s_cmp_lt_u32 s40, {NQ3-16}
    s_cbranch_scc0 B3_d
    s_add_u32 m0, m0, 8192
    v_add_u32 v74, 16384, v5
    global_load_lds_dwordx4 v74, s[36:37]
    B3_d:""")
    for c in (G2C(0), G2C(1), F8C, H2C(0), H2C(1)):
        for i in range(4): a(f"v_pk_add_u16 v{c+4+i}, v{c+i}, s72 op_sel:[1,0] op_sel_hi:[0,1]")
    mark(a, 0, "w1"); backoff(a, DLX); mark(a, 1, "w1")
    mark(a, 2, "w1")
    poll(a, "FT_p", f"global_load_dwordx4 {vr(LD,4)}, v3, s[56:57] sc1\nglobal_load_dwordx4 {vr(LD+4,4)}, v3, s[56:57] offset:128 sc1", (LD, LD+4), T)
    mark(a, 3)
    def transpose(src, dst, vw, vr0, off):
        a(f"ds_write_b128 v{vw}, {vr(src,4)} offset:{off}")
        for i in range(4): a(f"ds_read_b32 v{dst+i}, v{vr0} offset:{off + 64*i}")
    for e in range(2): transpose(LD+4*e, X+4*e, 7, 72, 1024*e)
    DR = lambda e: D + 8*e
    DI = lambda e: D + 8*e + 4
    def stage(e, cc, cs, asA, inv):
        re, im = (DI(e), DR(e)) if inv else (DR(e), DI(e))
        for dst, k in ((re, cc), (im, cs)):
            if asA: a(f"{MF16} {vr(dst,4)}, {vr(X+4*e,4)}, {vr(k,4)}, 0")
            else: a(f"{MF16} {vr(dst,4)}, {vr(k,4)}, {vr(X+4*e,4)}, 0")
    def exch(buf, swap):
        for e in range(2):
            for i in range(4):
                lo, hi = f"v{DR(e)+i}", f"v{DI(e)+i}"
                if swap: lo, hi = hi, lo
                cvt(a, X + 2*i + e, lo, hi)
        for i in range(4): a(f"ds_write_b64 v4, {vr(X+2*i,2)} offset:{buf+1024*i}")
        a(f"s_waitcnt {'vmcnt(0) ' if swap else ''}lgkmcnt(0)"); mark(a, 2 if swap else 0, "ft"); a("s_barrier"); mark(a, 7 if swap else 1, "ft")
        for e in range(2): a(f"ds_read_b128 {vr(X+4*e,4)}, v6 offset:{buf+1024*e}")
    for e in range(2):
        a(f"s_waitcnt lgkmcnt({5-5*e})"); stage(e, G2C(e), G2S(e), False, False)
    exch(L_EX, False)
    for e in range(2):
        a(f"s_waitcnt lgkmcnt({1-e})"); stage(e, F8C, F8S, False, False)
    for e in range(2):
        twiddle(a, DR(e), DI(e), WR+4*e, WI+4*e, T, X+4*e, swap=True)
        stage(e, F8C, F8S, False, True)
    exch(L_EX2, True)
    for e in range(2):
        a(f"s_waitcnt lgkmcnt({1-e})"); stage(e, H2C(e), H2S(e), True, True)
    for e in range(2):
        for i in range(4): cvt(a, X+4*e+i, f"v{DI(e)+i}", f"v{DR(e)+i}")
        a(f"ds_write_b128 v73, {vr(X+4*e,4)} offset:{1024*e}\nds_read_b128 {vr(LD+4*e,4)}, v7 offset:{1024*e}")
    for e in range(2):
        a(f"s_waitcnt lgkmcnt({2-2*e})")
        tag_in(a, LD+4*e, E)
        a(f"global_store_dwordx4 v3, {vr(LD+4*e,4)}, s[60:61] offset:{128*e} sc1")
    mark(a, 4)
    a("s_cmp_lt_u32 s41, 128\ns_cbranch_scc1 B3_go")
    stamp_end(a)
    a("s_endpgm\nFT_idle:\ns_barrier\ns_barrier\ns_barrier")
    stamp_end(a)
    a("s_endpgm\nB3_go:")
    CR, CI, TAR, TAI, TBR, TBI, EA, EL, EH, AD = 8, 32, 56, 60, 64, 68, 72, 76, 80, 84
    FA, FB = 96, 104
    SG = 96; FC, FS = 108, 112
    a(f"""    ds_read_b128 {vr(FC,4)}, v116 offset:{32768+1024}
    ds_read_b128 {vr(FS,4)}, v116 offset:{32768+2048}
    s_add_u32 s70, s48, {L_S3}
    v_add_u32 v4, s70, v118
    v_add_u32 v5, s70, v121
    v_add_u32 v7, 32768, v2""")
    a(f"""s_lshl_b32 s45, s40, 8
    s_add_u32 s45, s45, s41
    s_lshl_b32 s51, s40, 3
    s_mul_i32 s47, s45, 2304
    s_add_u32 s47, s47, 1152
    s_add_u32 s4, s4, s47
    s_addc_u32 s5, s5, 0
    s_mul_i32 s47, s40, 2304
    s_add_u32 s47, s47, {L_S3}           ; out staging
    s_cmp_lt_u32 s40, 3
    s_cselect_b32 s66, s65, s64
    s_lshr_b32 s67, s66, 3
    v_mov_b32 v121, v119
    v_add_u32 v0, s67, v4
    v_add_u32 v6, s67, v5
    v_add_u32 v122, s67, v119
    v_cmp_gt_u32 vcc, 8, v1
    v_add_u32 v95, {1024 + RS - 1152}, v2
    v_add_u32 v94, 1024, v2
    v_mov_b32 v123, v2
    v_cndmask_b32 v1, v95, v94, vcc""")
    lds = "\n".join(f"buffer_load_dwordx4 {vr(SG+4*j,4)}, v120, s[60:63], {('0', 's64', 's66')[j]} offen sc1" for j in range(3))
    TQ = lambda q: L_B3 - 32768 + q*1024
    for q in list(range(19, 22)) + [0, 1, 2, 3, 4, 5, 6, 7, 10, 11, 8, 9]: a(f"ds_read_b128 {vr(8+4*q,4)}, v7 offset:{TQ(q)}")
    a(f"s_waitcnt lgkmcnt(12)")
    for x in range(6): a(f"v_xor_b32 v{AD+x}, s51, v{AD+x}")
    for x in range(6, 10): a(f"v_add_u32 v{AD+x}, s47, v{AD+x}")
    a(f"v_mov_b32 v{AD+10}, v1\nv_mov_b32 v{AD+11}, v123")
    backoff(a, DLY)
    mark(a, 7, "b3")
    poll(a, "B3_p", lds, (SG, SG+4, SG+8), 3)
    mark(a, 5)
    transpose(SG, 116, 4, 5, 0); transpose(SG+4, 80, 4, 5, 8192); transpose(SG+8, 124, 0, 6, 0)
    XI = (116, 80, 124); PI = (116, 80, 124)
    for j in range(3):
        a(f"s_waitcnt lgkmcnt({10-5*j})")
        a(f"{MF16} {vr(56+8*j+4,4)}, {vr(FC,4)}, {vr(XI[j],4)}, 0\n{MF16} {vr(56+8*j,4)}, {vr(FS,4)}, {vr(XI[j],4)}, 0")
    for j in range(3):
        for i in range(4): cvt(a, PI[j]+i, f"v{56+8*j+i}", f"v{56+8*j+4+i}")
        a(f"ds_write_b128 v{121 if j < 2 else 122}, {vr(PI[j],4)} offset:{L_R + (8192 if j == 1 else 0)}")
    for q in range(12, 19): a(f"ds_read_b128 {vr(8+4*q,4)}, v7 offset:{TQ(q)}")
    a("s_waitcnt lgkmcnt(7)"); mark(a, 0, "b3"); a("s_barrier"); mark(a, 1, "b3")
    R = 112
    for s_ in range(6): a(f"ds_read_b64 {vr(R+2*s_,2)}, v{AD+s_} offset:{L_R}")
    a(f"""s_waitcnt vmcnt(0)
    s_or_b32 s66, s41, s40
    s_cmp_eq_u32 s66, 0
    s_cbranch_scc0 B3_nn
    v_mov_b32 v6, {WS_N}
    v_mov_b32 v7, s34
    s_mov_b64 exec, 1
    global_store_dword v6, v7, s[32:33] sc1
    s_mov_b64 exec, -1
    B3_nn:""")
    for x in (FB+2, FB+3, FB+6, FB+7): a(f"v_mov_b32 v{x}, 0")
    a("s_waitcnt lgkmcnt(2)")
    for i in range(2):
        for s_ in range(4): a(f"v_mov_b32 v{FA+4*i+s_}, v{R+2*s_+i}")
    a("s_waitcnt lgkmcnt(0)")
    for i in range(2):
        for s_ in range(2): a(f"v_mov_b32 v{FB+4*i+s_}, v{R+8+2*s_+i}")
    DT = (112, 0, 120)
    mark(a, 2, "b3")
    for i in range(2):
        tA = DT[2*i]; tB = DT[1]; blk = 1 + i
        for fr, ko, fst in ((FA, 0, True), (FB, 4, False)):
            for c, o in ((CR, 0), (CI, 4)):
                a(f"{MF16} {vr(tA+o,4)}, {vr(fr+4*i,4)}, {vr(c+ko,4)}, {'0' if fst else vr(tA+o,4)}")
                a(f"{MF16} {vr(tB+o,4)}, {vr(fr+4*i,4)}, {vr(c+8*blk+ko,4)}, {'0' if (fst and i == 0) else vr(tB+o,4)}")
    P = 8; OA = 20; OB = 32; T = FA
    twiddle(a, DT[0], DT[0]+4, TAR, TAI, T, P)
    a(f"{MF16} {vr(OA,4)}, {vr(P,4)}, {vr(EA,4)}, 0\n{MF16} {vr(OB,4)}, {vr(P,4)}, {vr(EL,4)}, 0")
    twiddle(a, DT[2], DT[2]+4, TAR, TAI, T, P+8)
    a(f"{MF16} {vr(OA+8,4)}, {vr(P+8,4)}, {vr(EA,4)}, 0\n{MF16} {vr(OB,4)}, {vr(P+8,4)}, {vr(EH,4)}, {vr(OB,4)}")
    twiddle(a, DT[1], DT[1]+4, TBR, TBI, T, P+4)
    a(f"{MF16} {vr(OA+4,4)}, {vr(P+4,4)}, {vr(EA,4)}, 0\n{MF16} {vr(OB+4,4)}, {vr(P+4,4)}, {vr(EL,4)}, 0")
    a(f"v_add_u32 v56, s47, v{AD+11}\nv_add_u32 v57, {2048 + RS - 1152}, v{AD+11}")
    for n, (o, ad, off) in enumerate(((OA, AD+6, 0), (OA+8, AD+6, 1152), (OB, AD+8, 0), (OA+4, AD+7, 0), (OB+4, AD+9, 0))):
        dd = 40 + 2*n
        cvt(a, dd, f"v{o}", f"v{o+1}"); cvt(a, dd+1, f"v{o+2}", f"v{o+3}")
        if n == 4: a("s_mov_b32 exec_lo, 0x00ff00ff\ns_mov_b32 exec_hi, 0x00ff00ff")
        a(f"ds_write_b64 v{ad}, {vr(dd,2)} offset:{off}")
    a("s_mov_b64 exec, -1")
    for j in range(3): a(f"ds_read_b128 {vr(60+4*j,4)}, v56 offset:{1024*j}")
    a(f"""s_waitcnt lgkmcnt(2)
    global_store_dwordx4 v{AD+11}, v[60:63], s[4:5] sc1
    s_waitcnt lgkmcnt(1)
    global_store_dwordx4 v{AD+10}, v[64:67], s[4:5] sc1
    s_mov_b64 exec, 0xffff
    s_waitcnt lgkmcnt(0)
    global_store_dwordx4 v57, v[68:71], s[4:5] sc1""")
    mark(a, 6)
    stamp_end(a)
    a("s_endpgm")

a = A()
a.l += [f".globl {KNAME}", ".p2align 8", f".type {KNAME},@function", f"{KNAME}:"]
stamp_start(a)
a(f"""s_load_dwordx16 s[8:23], s[0:1], 0
s_load_dwordx8 s[24:31], s[0:1], 64
s_load_dwordx2 s[4:5], s[0:1], 96
s_load_dwordx2 s[32:33], s[0:1], 112
s_cmp_ge_u32 s2, {NA+NB}
s_cbranch_scc1 EXIT
s_getpc_b64 s[6:7]
PF0:
v_lshrrev_b32 v2, 6, v0
v_lshlrev_b32 v3, 6, v0
v_readfirstlane_b32 s40, v2
v_min_u32 v3, CODE_END-PF0-4, v3
v_and_b32 v1, 63, v0
s_mov_b32 s73, 0
s_cmp_ge_u32 s40, 3
s_cbranch_scc1 NOPF
global_load_dword v123, v3, s[6:7]
NOPF:""")
if BFIRST: a(f"s_mov_b32 s41, s2\ns_cmp_lt_u32 s2, {NB}\ns_cbranch_scc1 RB\ns_sub_u32 s41, s2, {NB}")
else: a(f"s_sub_u32 s41, s2, {NA}\ns_cmp_ge_u32 s2, {NA}\ns_cbranch_scc1 RB\ns_mov_b32 s41, s2")
role_a(a)
role_b(a)
a("EXIT:\ns_endpgm\nCODE_END:")
if WSB:
    nl = []; arm = False
    for x in a.l:
        nl.append(x)
        if x in ("RA:", "UT:", "RB:", "RB_ld:"): arm = True
        if arm and x.strip() == "s_waitcnt lgkmcnt(0)":
            nl.append(f"    s_add_u32 s32, s32, {WSB}"); nl.append("    s_addc_u32 s33, s33, 0"); arm = False
    a.l = nl
if int(OPT.get("nopka", 1)):
    nl = []
    for x in a.l:
        m = re.match(r"\s*v_pk_add_f32 v\[(\d+):\d+\], v\[(\d+):\d+\], v\[(\d+):\d+\]", x)
        if m:
            d, p, q = map(int, m.groups())
            nl += [f"    v_add_f32 v{d}, v{p}, v{q}", f"    v_add_f32 v{d+1}, v{p+1}, v{q+1}"]
        else: nl.append(x)
    a.l = nl
if STAMP and MSET == "st":
    nl = []
    for i, x in enumerate(a.l):
        if x == "RB_gen:": nl.append("    s_memtime s[82:83]")
        nl.append(x)
        if x == "RB_ld:": nl.append("    s_memtime s[78:79]")
        if x.strip() == "global_load_lds_dwordx4 v3, s[26:27]": nl.insert(len(nl)-1, "    s_memtime s[80:81]")
        if x == "B1_go:": nl.append("    s_memtime s[84:85]")
        if x.strip().startswith("ds_read_b128 v[68:71], v2 offset:15360"): nl.insert(len(nl)-1, "    s_memtime s[86:87]")
        if x.strip().startswith("ds_read_b64_tr_b16 v[80:81], v68 offset:0"): nl.insert(len(nl)-2, "    s_memtime s[88:89]"); nl.insert(len(nl)-1, "    s_memtime s[90:91]")
    a.l = nl
body, tot = pad(a.l)
def dump(t):
    w = t.reshape(-1)
    return "\n".join(".long " + ",".join("0x%x" % x for x in w[i:i+16]) for i in range(0, len(w), 16))
tabs = ".p2align 8\nTAB_B1:\n" + dump(TB1) + "\n" + dump(TB3) + "\n"
hdr = f"""; S4 long-conv (Toeplitz MFMA) + GFNet 2D spectral filter (MFMA FFT), one persistent launch. Generated by my own generator (gen20.py).
; @launch grid=({NA+NB},1,1) block=(512,1,1) lds={LDS}
.amdgcn_target "amdgcn-amd-amdhsa--gfx950"
.text
"""
kd = f""".section .rodata,"a"
.p2align 6
.amdhsa_kernel {KNAME}
  .amdhsa_next_free_vgpr 128
  .amdhsa_next_free_sgpr 102
  .amdhsa_accum_offset 128
  .amdhsa_group_segment_fixed_size 0
  .amdhsa_kernarg_size 120
  .amdhsa_user_sgpr_count 2
  .amdhsa_user_sgpr_kernarg_segment_ptr 1
  .amdhsa_system_sgpr_workgroup_id_x 1
.end_amdhsa_kernel
"""
open(sys.argv[1], "w").write(hdr + "\n".join(body) + "\n" + tabs + kd)
print("nop states inserted", tot)
```
